```python
import torch

def _softmax(x, axis=-1):
    return torch.softmax(x, dim=axis)
def _gelu(x):
    return torch.nn.functional.gelu(x, approximate="tanh")
def _silu(x):
    return torch.nn.functional.silu(x)
def _sigmoid(x):
    return torch.sigmoid(x)
def _layernorm(x, axis=-1, eps=1e-5):
    m = x.mean(dim=axis, keepdim=True)
    v = x.var(dim=axis, keepdim=True, unbiased=False)
    return (x - m) / torch.sqrt(v + eps)
def _scatter_add(tgt, idx, src, axis=0):
    return tgt.clone().index_add_(axis, idx, src)
def _segment_sum(src, seg, n):
    out = torch.zeros((n,) + src.shape[1:], dtype=src.dtype)
    return out.index_add_(0, seg, src)
def _pad(x, pw):
    flat = tuple(v for pair in reversed(pw) for v in pair)
    return torch.nn.functional.pad(x, flat)

kernel_name = 'recurrent_scan__spectral_fnet__moe_arch_mod__prompt'

def setup_inputs():

    _w = (lambda a: (lambda t: t.to(torch.bfloat16) if t.is_floating_point() else t)(torch.as_tensor(a)))
    def _A_setup():
        B, S, D = 1, 2048, 448
        ns = torch.arange(S)[:, None] * torch.arange(S)[None, :]
        nd = torch.arange(D)[:, None] * torch.arange(D)[None, :]
        Ws_re = torch.cos(-2.0 * torch.pi * ns / S).to(float)
        Ws_im = torch.sin(-2.0 * torch.pi * ns / S).to(float)
        Wd_re = torch.cos(-2.0 * torch.pi * nd / D).to(float)
        Wd_im = torch.sin(-2.0 * torch.pi * nd / D).to(float)
        return {
            "x": _w((lambda *s: torch.randn(*s, dtype=torch.bfloat16) * 0.05)(B, S, D)),
            "dft_seq_re": _w(Ws_re),
            "dft_seq_im": _w(Ws_im),
            "dft_hid_re": _w(Wd_re),
            "dft_hid_im": _w(Wd_im),
        }
    _A_in = _A_setup()

    def _B_setup():
        B, S, D, F, C = 1, 2048, 448, 1792, 1
        return {
            "x": _w((lambda *s: torch.randn(*s, dtype=torch.bfloat16) * 0.05)(B, S, D)),
            "w_r": _w((lambda *s: torch.randn(*s, dtype=torch.bfloat16) * 0.05)(D)),
            "w_gate": _w((lambda *s: torch.randn(*s, dtype=torch.bfloat16) * 0.05)(D, F)),
            "w_up": _w((lambda *s: torch.randn(*s, dtype=torch.bfloat16) * 0.05)(D, F)),
            "w_down": _w((lambda *s: torch.randn(*s, dtype=torch.bfloat16) * 0.05)(F, D)),
        }
    _B_in = _B_setup()

    return {
        "A_x": _A_in["x"],
        "A_dft_seq_re": _A_in["dft_seq_re"],
        "A_dft_seq_im": _A_in["dft_seq_im"],
        "A_dft_hid_re": _A_in["dft_hid_re"],
        "A_dft_hid_im": _A_in["dft_hid_im"],
        "B_x": _B_in["x"],
        "B_w_r": _B_in["w_r"],
        "B_w_gate": _B_in["w_gate"],
        "B_w_up": _B_in["w_up"],
        "B_w_down": _B_in["w_down"],
    }

def reference(A_x, A_dft_seq_re, A_dft_seq_im, A_dft_hid_re, A_dft_hid_im, B_x, B_w_r, B_w_gate, B_w_up, B_w_down):
    def _A_ref(x, dft_seq_re, dft_seq_im, dft_hid_re, dft_hid_im):
        a = torch.einsum("bsd,ed->bse", x, dft_hid_re)
        b = torch.einsum("bsd,ed->bse", x, dft_hid_im)
        y = torch.einsum("ts,bse->bte", dft_seq_re, a) - torch.einsum("ts,bse->bte", dft_seq_im, b)
        return y

    def _B_ref(x, w_r, w_gate, w_up, w_down):
        B, S, D = x.shape
        C = 1
        r = x @ w_r
        idx = torch.argsort(-r, axis=-1)[:, :C]
        idx_e = (lambda x, n, axis: torch.repeat_interleave(x, n, dim=axis))(idx.reshape(B, C, 1), D, axis=2)
        x_sel = (lambda x, i, axis: torch.take_along_dim(x, i, dim=axis))(x, idx_e, axis=1)
        g = _silu(x_sel @ w_gate)
        u = x_sel @ w_up
        y = (g * u) @ w_down
        r_sel = _sigmoid((lambda x, i, axis: torch.take_along_dim(x, i, dim=axis))(r, idx, axis=1))
        y = y * r_sel.reshape(B, C, 1)
        b_off = (torch.arange(B) * S).reshape(B, 1)
        flat_idx = (idx + b_off).reshape(B * C)
        zero = (x * 0.0).reshape(B * S, D)
        upd = _scatter_add(zero, flat_idx, y.reshape(B * C, D), axis=0)
        return x + upd.reshape(B, S, D)

    x = A_x
    xn = _layernorm(x, axis=-1)
    s = _A_ref(xn, A_dft_seq_re, A_dft_seq_im, A_dft_hid_re, A_dft_hid_im)
    g = _silu(_B_ref(xn, B_w_r, B_w_gate, B_w_up, B_w_down))
    return x + s * g
```

```python
KN = "recurrent_scan__spectral_fnet__moe_arch_mod__prompt"
HEADER = open('cdna_kernels/' + KN + '.s.ref').read().split('; Override launch geometry')[0]

class Asm:
    def __init__(self):
        self.lines = []
        self.nlab = 0
    def __call__(self, s=""):
        for l in s.split("\n"):
            l = l.strip()
            if l:
                self.lines.append(l if l.endswith(":") else "    " + l)
    def label(self, base="L"):
        self.nlab += 1
        return "%s_%d" % (base, self.nlab)
    def srd(self, d, b, nbytes):
        self(f"""s_mov_b32 s{d}, s{b}
        s_mov_b32 s{d+1}, s{b+1}
        s_mov_b32 s{d+2}, {nbytes}
        s_mov_b32 s{d+3}, 0x00020000""")
    def text(self):
        return "\n".join(self.lines) + "\n"

def kernel_text(name, body):
    return f""".globl {name}
.p2align 8
.type {name},@function
{name}:
{body}"""

def kd(name, vgpr=256, sgpr=102, accum=None):
    if accum is None:
        accum = min(256, (vgpr + 3) // 4 * 4)
    return f""".p2align 6
.amdhsa_kernel {name}
  .amdhsa_next_free_vgpr {vgpr}
  .amdhsa_next_free_sgpr {sgpr}
  .amdhsa_accum_offset {accum}
  .amdhsa_group_segment_fixed_size 0
  .amdhsa_kernarg_size 104
  .amdhsa_user_sgpr_count 2
  .amdhsa_user_sgpr_kernarg_segment_ptr 1
  .amdhsa_system_sgpr_workgroup_id_x 1
.end_amdhsa_kernel
"""

def single(body, grid, block, lds=0, vgpr=256, sgpr=102, accum=None):
    name = KN + "_kernel"
    return (HEADER + f"; @launch grid=({grid},1,1) block=({block},1,1) lds={lds}\n"
            + '.amdgcn_target "amdgcn-amd-amdhsa--gfx950"\n.text\n'
            + kernel_text(name, body) + '.section .rodata,"a"\n' + kd(name, vgpr, sgpr, accum))

def multi(kernels, launches):
    s = HEADER
    for n, g, b, l in launches:
        s += f"; @launch kernel={n} grid=({g},1,1) block=({b},1,1) lds={l}\n"
    s += '.amdgcn_target "amdgcn-amd-amdhsa--gfx950"\n.text\n'
    for n, (body, v, sg, ac) in kernels.items():
        s += kernel_text(n, body)
    s += '.section .rodata,"a"\n'
    for n, (body, v, sg, ac) in kernels.items():
        s += kd(n, v, sg, ac)
    return s
```

```python
import re
TRANS = ("v_exp_f32", "v_log_f32", "v_rcp_f32", "v_rsq_f32", "v_sqrt_f32", "v_sin_f32", "v_cos_f32", "v_rcp_iflag_f32")
def regs(tok):
    tok = tok.strip()
    tok = tok.lstrip("-")
    m = re.fullmatch(r"abs\((.*)\)|\|(.*)\|", tok)
    if m: tok = m.group(1) or m.group(2)
    m = re.fullmatch(r"([vsa])(\d+)", tok)
    if m: return {(m.group(1), int(m.group(2)))}
    m = re.fullmatch(r"([vsa])\[(\d+):(\d+)\]", tok)
    if m: return {(m.group(1), i) for i in range(int(m.group(2)), int(m.group(3)) + 1)}
    if tok == "vcc": return {("s", "vcc_lo"), ("s", "vcc_hi")}
    if tok in ("vcc_lo", "vcc_hi", "m0"): return {("s", tok)}
    if tok == "exec": return {("s", "exec_lo"), ("s", "exec_hi")}
    if tok in ("exec_lo", "exec_hi"): return {("s", tok)}
    return set()
class I:
    pass
def parse(line):
    l = line.split(";")[0].strip()
    if not l or l.endswith(":") or l.startswith("."): return None
    p = l.split(None, 1)
    op = p[0]; rest = p[1] if len(p) > 1 else ""
    ops = []; depth = 0; cur = ""
    for ch in rest:
        if ch == "[": depth += 1
        if ch == "]": depth -= 1
        if ch == "," and depth == 0: ops.append(cur.strip()); cur = ""
        else: cur += ch
    if cur.strip(): ops.append(cur.strip())
    mods = ""
    if ops:
        t = ops[-1].split(None, 1)
        ops[-1] = t[0]; mods = t[1] if len(t) > 1 else ""
    i = I(); i.op = op; i.ops = ops; i.mods = mods
    i.mfma = op.startswith("v_mfma")
    i.valu = op.startswith("v_") and not i.mfma
    i.vmem = op.startswith(("buffer_", "global_"))
    i.ds = op.startswith("ds_")
    i.salu = op.startswith("s_")
    i.dpp = "_dpp" in op or any(k in mods for k in ("quad_perm", "row_", "wave_"))
    i.sdwa = "_sdwa" in op
    i.trans = any(op.startswith(t) for t in TRANS)
    i.dot = op.startswith("v_dot")
    i.perml = op.startswith("v_permlane")
    i.rdlane = op.startswith(("v_readlane", "v_readfirstlane"))
    R = [regs(o) for o in ops]
    i.w = set(); i.r = set(); i.srcc = set(); i.ab = set(); i.sdata = set(); i.lanesel = set()
    U = lambda l: set().union(*l) if l else set()
    if i.mfma:
        i.w = R[0]; i.ab = R[1] | R[2]; i.srcc = R[3]; i.r = i.ab | i.srcc
        i.passes = 8 if "32x32" in op else 4
    elif i.valu:
        if i.perml or op.startswith("v_swap"):
            i.w = R[0] | R[1]; i.r = R[0] | R[1]
        elif op.startswith(("v_add_co", "v_sub_co", "v_addc_co", "v_subb_co", "v_subrev_co", "v_mad_u64", "v_div_scale")):
            i.w = R[0] | R[1]; i.r = U(R[2:])
        elif op == "v_nop":
            pass
        else:
            i.w = R[0]; i.r = U(R[1:])
            if op.startswith(("v_fmac", "v_dot2c", "v_mac", "v_writelane")) or i.dpp or i.sdwa: i.r = i.r | R[0]
            if op.startswith("v_cmpx"): raise Exception("no cmpx")
            if op.startswith(("v_readlane", "v_writelane")): i.lanesel = R[2]
            if i.dot:
                i.srcc = R[0] if op.startswith("v_dot2c") else R[3]
                i.ab = R[1] | R[2]
    elif i.vmem:
        if op.startswith(("buffer_wbl2", "buffer_inv")):
            i.states = 1; i.lds = False; return i
        lds = re.search(r"\blds\b", mods) is not None
        i.lds = lds
        if "load" in op:
            if lds: i.r = U(R) | {("s", "m0")}
            else: i.w = R[0]; i.r = U(R[1:])
        else:
            i.r = U(R)
            d = R[0] if op.startswith("buffer_") else R[1]
            if "x3" in op or "x4" in op: i.sdata = d
            if "atomic" in op and "sc0" in mods: i.w = R[0]
    elif i.ds:
        if op.startswith(("ds_read", "ds_bpermute", "ds_permute", "ds_swizzle")) or "_rtn" in op:
            i.w = R[0]; i.r = U(R[1:])
        else: i.r = U(R)
    elif i.salu:
        if op.startswith(("s_cmp", "s_cbranch", "s_branch", "s_waitcnt", "s_nop", "s_barrier", "s_endpgm", "s_sleep", "s_setprio", "s_bitcmp")):
            i.r = U(R)
        else:
            i.w = R[0]; i.r = U(R[1:])
            if "saveexec" in op: i.w = i.w | regs("exec")
    i.states = 1
    if op == "s_nop": i.states = int(ops[0], 0) + 1
    return i
def V(s): return {x for x in s if x[0] in "va"}
def S(s): return {x for x in s if x[0] == "s"}
def need(p, c):
    n = 0
    pw = V(p.w)
    if p.valu:
        if c.mfma and pw & c.r: n = max(n, 3 if p.dot else 2)
        if c.valu:
            if p.trans and pw & c.r: n = max(n, 1)
            if c.dpp and pw & c.r: n = max(n, 2)
            if c.rdlane and pw & c.r: n = max(n, 1)
            if c.perml and pw & c.r: n = max(n, 2)
            if (p.sdwa or "op_sel" in p.mods and not p.op.startswith("v_pk_")) and pw & (c.r | c.w): n = max(n, 1)
            if S(p.w) & c.r: n = max(n, 2)
            if S(p.w) & c.lanesel: n = max(n, 4)
        if p.dot:
            if c.op == p.op:
                if pw & c.ab: n = max(n, 3)
            elif pw & (c.r | c.w): n = max(n, 3)
        if c.vmem and S(p.w) & c.r: n = max(n, 5)
    if p.mfma:
        big = 12 if p.passes == 8 else 8
        if c.mfma:
            if pw & c.ab: n = max(n, big)
            if pw & c.srcc:
                if not (c.srcc == p.w and c.passes == p.passes): n = max(n, big - 2)
            if pw & c.w and not (c.srcc == p.w): n = max(n, big - 2)
        elif (c.valu or c.vmem or c.ds) and pw & (c.r | c.w): n = max(n, big)
        if c.valu and V(p.srcc) & c.w: n = max(n, 7 if p.passes == 8 else 3)
    if p.vmem and p.sdata:
        if p.sdata & c.w: n = max(n, 2 if c.valu or c.mfma else 1)
    if p.salu and ("s", "m0") in p.w and c.vmem and getattr(c, "lds", False): n = max(n, 1)
    return n
def _need_hist(hist, i):
    dist = 0; add = 0
    for p in reversed(hist):
        if dist >= 20: break
        add = max(add, need(p, i) - dist)
        dist += p.states
    return add
def fix(text, verbose=False):
    lines = text.split("\n")
    back = {}
    for it in range(4):
        out = []; hists = [[]]; snaps = {}; seen = set(); newback = {}; total = 0
        for line in lines:
            l = line.split(";")[0].strip()
            if l.endswith(":"):
                lab = l[:-1]; seen.add(lab)
                hists = hists + snaps.get(lab, []) + back.get(lab, [])
                hists = [list(h) for h in hists]
                out.append(line); continue
            i = parse(line)
            if i is None:
                out.append(line); continue
            add = max([_need_hist(h, i) for h in hists] + [0])
            if add > 0:
                total += add
                out.append("    s_nop %d" % (add - 1))
                nop = parse("s_nop %d" % (add - 1))
                for h in hists: h.append(nop)
                if verbose and it == 3: print("nop", add, "before", line.strip())
            out.append(line)
            for h in hists: h.append(i)
            hists = [h[-20:] for h in hists]
            u = []
            for h in hists:
                if not any(len(h) == len(g) and all(a is b for a, b in zip(h, g)) for g in u): u.append(h)
            hists = u
            if i.op.startswith(("s_cbranch", "s_branch")):
                tgt = i.ops[0]
                (newback if tgt in seen else snaps).setdefault(tgt, []).extend([list(h) for h in hists])
            if i.op in ("s_branch", "s_endpgm"):
                hists = []
        back = newback
    if verbose: print("total nop states", total)
    return "\n".join(out)
```

```python
import sys
from asmlib import *
import hazard

O_CERT = 0x1000; O_FCERT = 0x2000; O_KEY = 0x10000; O_ST = 0x20000; O_P = 0x40000; O_G = 0x80000
O_STAMP = 0x180000; WS_SIZE = 0x200000
XBYTES = 2048 * 896
L_XS = 0; L_WR = 28672; L_RS = 32768; L_KEY = 32896; L_ROW = 33024; L_FS = 36864; LDS = 45056
L_FEX = 28672
SPIN = 0x10000
import struct
def f2u(x): return struct.unpack("<I", struct.pack("<f", x))[0]
LOG2E = 1.4426950408889634

def vr(b, n=1): return f"v{b}" if n == 1 else f"v[{b}:{b + n - 1}]"

def gen(stamps=False, prefetch=True):
    a = Asm()
    X, WS, OUT, WR = 12, 16, 20, 24
    sW, sNON, sP, sI, sCG, sTAU, sALT, sQ, sSTR = 28, 29, 30, 31, 32, 33, 34, 35, 36
    sGOFF, sT1, sJ, sIDX, sCNT, sKEY, sONE = 37, 38, 39, 40, 41, 42, 43
    sT = 44
    sSTAMP = 60
    nst = [0]
    def stamp(k):
        if stamps:
            a(f"s_memrealtime s[{sSTAMP + 2 * k}:{sSTAMP + 2 * k + 1}]")
    def setexec(lo, hi):
        a(f"s_mov_b32 exec_lo, {lo:#x}\ns_mov_b32 exec_hi, {hi:#x}")
    def fullexec(): a("s_mov_b64 exec, -1")
    def spin_check(lab_out):
        a(f"s_add_u32 s{sCNT}, s{sCNT}, 1\ns_cmp_gt_u32 s{sCNT}, {SPIN}\ns_cbranch_scc1 {lab_out}")
    def wave_umax(v, sdst):
        for m in ["row_shr:1 row_mask:0xf", "row_shr:2 row_mask:0xf", "row_shr:4 row_mask:0xf", "row_shr:8 row_mask:0xf", "row_bcast:15 row_mask:0xa", "row_bcast:31 row_mask:0xc"]:
            a(f"v_max_u32_dpp v{v}, v{v}, v{v} {m} bank_mask:0xf")
        a(f"v_readlane_b32 s{sdst}, v{v}, 63")
    def write_stamps(n):
        if not stamps: return
        fullexec()
        a("s_waitcnt lgkmcnt(0)")
        for k in range(12): a(f"v_mov_b32 v{4 + k}, s{sSTAMP + 2 * k}")
        a(f"""s_lshl_b32 s{sT}, s2, 2
        s_add_u32 s{sT}, s{sT}, s{sW}
        s_lshl_b32 s{sT}, s{sT}, 6
        s_add_u32 s{sT}, s{sT}, {O_STAMP}
        v_mov_b32 v2, 0""")
        setexec(1, 0)
        for k in range(3): a(f"buffer_store_dwordx4 v[{4 + 4 * k}:{7 + 4 * k}], v2, s[{WS}:{WS + 3}], s{sT} offen offset:{16 * k}")

    a("L_start:")
    a(f"""s_cmp_ge_u32 s2, 368
    s_cbranch_scc1 L_end
    s_load_dwordx2 s[{X}:{X + 1}], s[0:1], 0
    s_load_dwordx2 s[{WS}:{WS + 1}], s[0:1], 96""")
    if stamps:
        for k in range(1, 12): a(f"s_mov_b32 s{sSTAMP + 2 * k}, 0")
    stamp(0)
    vL = 1
    a(f"""v_and_b32 v{vL}, 63, v0
    v_lshrrev_b32 v2, 6, v0
    s_mov_b32 s{X + 2}, {XBYTES}
    s_mov_b32 s{X + 3}, 0x20000
    v_readfirstlane_b32 s{sW}, v2
    s_mov_b32 s{WS + 2}, {WS_SIZE}
    s_mov_b32 s{WS + 3}, 0x20000
    s_mov_b32 s{sCNT}, 0
    s_mov_b32 s{sONE}, 0x3f803f80""")
    if prefetch:
        a(f"""s_cmp_ge_u32 s2, 16
        s_cbranch_scc1 L_nopf
        s_getpc_b64 s[{sT}:{sT + 1}]
        L_pc:
        v_lshlrev_b32 v2, 6, v0
        v_min_u32 v2, (L_codeend - L_pc - 4), v2
        global_load_dword v44, v2, s[{sT}:{sT + 1}]
        L_nopf:""")
    a("s_cmp_ge_u32 s2, 256\ns_cbranch_scc1 L_ffn")

    vG, vC = 4, 5
    vROW, vXA, vGA, vLW, vLR0, vLR1 = 6, 7, 8, 9, 10, 11
    vSW = 12
    XR = 16; WRr = 44; B = 72; CH = 184; M1 = 216; H = 224
    Bc = lambda kk: B + 8 * kk
    Bs = lambda kk: B + 8 * kk + 4
    a(f"""s_load_dwordx2 s[{OUT}:{OUT + 1}], s[0:1], 80
    s_load_dwordx2 s[{WR}:{WR + 1}], s[0:1], 48
    s_mov_b32 s{OUT + 2}, {XBYTES}
    s_mov_b32 s{OUT + 3}, 0x20000
    s_mov_b32 s{WR + 2}, 896
    s_mov_b32 s{WR + 3}, 0x20000
    s_and_b32 s{sTAU}, s2, 7
    s_lshr_b32 s{sQ}, s2, 3
    s_and_b32 s{sCG}, s{sQ}, 3
    s_sub_u32 s{sALT}, 16, s{sTAU}
    s_cmp_eq_u32 s{sTAU}, 0
    s_cselect_b32 s{sALT}, 8, s{sALT}
    s_bitcmp1_b32 s{sQ}, 2
    s_cselect_b32 s{sP}, s{sALT}, s{sTAU}
    s_lshr_b32 s{sT}, s{sQ}, 3
    s_lshl_b32 s{sT}, s{sT}, 4
    s_add_u32 s{sP}, s{sP}, s{sT}
    s_cmp_eq_u32 s{sP}, 0
    s_cselect_b32 s{sSTR}, 64, 128
    s_sub_u32 s{sT}, 0, s{sSTR}
    s_sub_u32 s{sT + 1}, 2048, s{sP}
    s_cmp_ge_u32 s{sW}, 2
    s_cselect_b32 s{sT}, s{sT}, s{sSTR}
    s_cselect_b32 s{sT + 1}, s{sT + 1}, s{sP}
    v_bfe_u32 v2, v0, 3, 4
    v_mul_i32_i24 v{vROW}, s{sT}, v2
    v_add_u32 v{vROW}, s{sT + 1}, v{vROW}
    v_mov_b32 v13, 1024
    v_cmp_eq_u32 vcc, 2048, v{vROW}
    v_and_b32 v14, 7, v0
    v_cndmask_b32 v{vROW}, v{vROW}, v13, vcc
    v_mul_u32_u24 v{vXA}, 896, v{vROW}
    v_lshl_add_u32 v{vXA}, v14, 4, v{vXA}
    v_lshlrev_b32 v15, 4, v{vL}""")
    a(f"""s_lshl_b32 s{sI}, s{sCG}, 2
    s_add_u32 s{sI}, s{sI}, s{sW}
    s_cmp_eq_u32 s{sCG}, 3
    s_subb_u32 s{sI}, s{sI}, 0
    s_lshr_b32 s{sT}, s{sCG}, 1
    s_add_u32 s{sT}, s{sT}, s{sW}
    s_add_u32 s{sT + 1}, s{sCG}, 12
    s_cmp_eq_u32 s{sT}, 4
    s_cselect_b32 s{sI}, s{sT + 1}, s{sI}
    s_mul_i32 s{sGOFF}, s{sP}, 896
    s_lshl_b32 s{sT}, s{sI}, 6
    s_add_u32 s{sGOFF}, s{sGOFF}, s{sT}
    s_add_u32 s{sGOFF}, s{sGOFF}, {O_G}
    v_lshrrev_b32 v{vG}, 4, v{vL}
    v_and_b32 v{vC}, 15, v0
    s_waitcnt lgkmcnt(0)""")
    stamp(1)
    a(f"s_load_dword s{sNON}, s[{WS}:{WS + 1}], 0")
    a(f"buffer_load_dwordx4 v[{M1}:{M1 + 3}], v15, s[{WR}:{WR + 3}], 0 offen")
    for cb in range(7):
        a(f"buffer_load_dwordx4 {vr(XR + 4 * cb, 4)}, v{vXA}, s[{X}:{X + 3}], 0 offen offset:{128 * cb}")
    a(f"""v_mul_u32_u24 v{vGA}, 57344, v{vC}
    v_lshl_add_u32 v{vGA}, v{vG}, 4, v{vGA}
    v_mov_b32 v{H}, -1
    v_mov_b32 v{H + 1}, -1
    v_mov_b32 v{H + 2}, -1
    v_mov_b32 v{H + 3}, -1
    s_cmp_ge_u32 s{sI}, 14
    s_cselect_b32 s{sT}, {WS_SIZE}, s{sGOFF}
    buffer_store_dwordx4 v[{H}:{H + 3}], v{vGA}, s[{WS}:{WS + 3}], s{sT} offen sc1""")
    a(f"""v_mov_b32 v2, 0
    ds_write_b32 v2, v2 offset:{L_KEY}""")
    a(f"""v_bfe_u32 v2, v0, 3, 4
    v_xor_b32 v2, v2, v14
    v_lshlrev_b32 v2, 4, v2
    v_lshl_add_u32 v{vLW}, v14, 8, v2
    s_lshr_b32 s{sT}, s{sW}, 1
    s_mul_i32 s{sT}, s{sT}, 14336
    v_add_u32 v{vLW}, s{sT}, v{vLW}
    v_xor_b32 v2, v{vC}, v{vG}
    v_lshlrev_b32 v2, 4, v2
    v_lshl_add_u32 v{vLR0}, v{vG}, 8, v2
    v_xor_b32 v{vLR1}, 64, v{vLR0}
    s_waitcnt lgkmcnt(0)
    s_add_u32 s{sNON}, s{sNON}, 1
    s_barrier""")
    P0, P1 = CH, CH + 16
    vSTEP, vCO = 2, 14
    a(f"""s_lshl_b32 s{sT}, s{sI}, 4
    s_add_u32 s{sT}, s{sT}, 1
    v_add_u32 v3, s{sT}, v{vC}
    v_cvt_f32_u32 v{vSTEP}, v3
    v_mul_f32 v{vSTEP}, {f2u(1 / 448):#x}, v{vSTEP}
    v_lshlrev_b32 v13, 31, v3
    v_lshrrev_b32 v3, 16, v13
    v_or_b32 v13, v13, v3
    v_lshlrev_b32 v3, 3, v{vG}
    v_cvt_f32_u32 v3, v3
    v_mul_f32 v3, v3, v{vSTEP}
    v_mul_f32 v15, {f2u(32.0):#x}, v{vSTEP}
    v_cos_f32 v{vCO}, v15""")
    for j in range(8):
        a(f"""v_cos_f32 v{P0 + j}, v3
        v_sin_f32 v{P0 + 8 + j}, v3
        v_add_f32 v{vSW}, v3, v15
        v_cos_f32 v{P1 + j}, v{vSW}
        v_sin_f32 v{P1 + 8 + j}, v{vSW}""")
        if j < 7: a(f"v_add_f32 v3, v3, v{vSTEP}")
    a(f"v_add_f32 v{vCO}, v{vCO}, v{vCO}")
    def packB(kk, Pb):
        for m in range(8):
            a(f"v_cvt_pk_bf16_f32 v{Bc(kk) + m}, v{Pb + 2 * m}, v{Pb + 2 * m + 1}")
        for m in range(8):
            a(f"v_xor_b32 v{Bc(kk + 7) + m}, v13, v{Bc(kk) + m}")
    packB(0, P0); packB(1, P1)
    for kk in range(2, 7):
        cur, prev = (P1, P0) if kk % 2 == 0 else (P0, P1)
        for m in range(8):
            a(f"v_pk_fma_f32 {vr(prev + 2 * m, 2)}, {vr(vCO, 2)}, {vr(cur + 2 * m, 2)}, {vr(prev + 2 * m, 2)} op_sel_hi:[0,1,1] neg_lo:[0,0,1] neg_hi:[0,0,1]")
        packB(kk, prev)
    a(f"""s_lshl_b32 s{sT}, s{sW}, 10
    v_lshlrev_b32 v2, 4, v{vL}
    v_add_u32 v2, s{sT}, v2
    v_and_b32 v3, 7, v0
    v_lshlrev_b32 v3, 4, v3
    v_add_u32 v3, s{sT}, v3
    s_waitcnt vmcnt(8)
    ds_write_b128 v2, v[{M1}:{M1 + 3}] offset:{L_WR}""")
    for cb in range(7):
        a(f"ds_read_b128 {vr(WRr + 4 * cb, 4)}, v3 offset:{L_WR + 128 * cb}")
    a(f"""v_lshlrev_b32 v2, 2, v{vG}
    v_mul_u32_u24 v2, s{sSTR}, v2
    v_add_u32 v2, s{sP}, v2
    v_mul_u32_u24 v2, v2, v{vC}
    v_mul_u32_u24 v3, s{sSTR}, v{vC}
    v_cvt_f32_u32 v2, v2
    v_cvt_f32_u32 v3, v3
    v_mul_f32 v2, {f2u(1 / 2048):#x}, v2
    v_mul_f32 v3, {f2u(1 / 2048):#x}, v3""")
    for r in range(4):
        a(f"v_cos_f32 v{CH + r}, v2\nv_sin_f32 v{CH + 4 + r}, v2")
        if r < 3: a("v_add_f32 v2, v2, v3")
    a("s_waitcnt lgkmcnt(0)")
    a(f"""v_cvt_pk_bf16_f32 v{M1}, v{CH}, v{CH + 1}
    v_cvt_pk_bf16_f32 v{M1 + 1}, v{CH + 2}, v{CH + 3}
    v_cvt_pk_bf16_f32 v{M1 + 2}, -v{CH + 4}, -v{CH + 5}
    v_cvt_pk_bf16_f32 v{M1 + 3}, -v{CH + 6}, -v{CH + 7}
    v_cvt_pk_bf16_f32 v{M1 + 4}, v{CH + 4}, v{CH + 5}
    v_cvt_pk_bf16_f32 v{M1 + 5}, v{CH + 6}, v{CH + 7}
    v_mov_b32 v{M1 + 6}, v{M1}
    v_mov_b32 v{M1 + 7}, v{M1 + 1}
    s_cmp_lg_u32 s{sP}, 0
    s_cbranch_scc1 L_m1done""")
    for m in range(4):
        a(f"v_and_b32 v{M1 + 4 + m}, 0xffff0000, v{M1 + m}\nv_and_b32 v{M1 + m}, 0xffff, v{M1 + m}")
    setexec(0xffff, 0)
    a(f"""v_and_b32 v2, 1, v0
    v_lshlrev_b32 v2, 15, v2
    v_or_b32 v{M1 + 2}, 0x3f80, v2""")
    fullexec()
    a("L_m1done:")
    a(f"v_mov_b32 v{vSW}, 0")
    for m in range(28): a(f"v_dot2c_f32_bf16 v{vSW}, s{sONE}, v{WRr + m}")
    a(f"""s_cmp_ge_u32 s{sQ}, 14
    s_cselect_b32 s{sT1}, s{sALT}, s{sTAU}
    s_cselect_b32 s{sT}, 14, 0
    s_sub_u32 s{sJ}, s{sQ}, s{sT}""")
    def genH():
        a(f"""v_and_b32 v2, 31, v0
        s_lshl_b32 s{sT}, s{sW}, 5
        v_add_u32 v2, s{sT}, v2
        s_cmp_lt_u32 s{sJ}, 7
        s_cbranch_scc1 L_hdir
        s_min_u32 s{sT}, s{sT1}, 1
        v_add_u32 v2, s{sT}, v2
        v_sub_u32 v2, 0, v2
        L_hdir:
        v_lshlrev_b32 v13, 31, v2
        v_cvt_f32_i32 v2, v2
        v_mul_f32 v2, {f2u(-1 / 128):#x}, v2
        v_lshrrev_b32 v3, 5, v{vL}
        v_lshlrev_b32 v3, 2, v3
        v_cvt_f32_u32 v3, v3
        v_mul_f32 v3, v3, v2
        v_mul_f32 v15, {f2u(8.0):#x}, v2
        v_cos_f32 v{vCO}, v15""")
        Q0, Q1 = CH, CH + 8
        for m in range(4):
            a(f"""v_cos_f32 v{Q0 + 2 * m}, v3
            v_sin_f32 v{Q0 + 2 * m + 1}, v3
            v_add_f32 v{CH + 16}, v3, v15
            v_cos_f32 v{Q1 + 2 * m}, v{CH + 16}
            v_sin_f32 v{Q1 + 2 * m + 1}, v{CH + 16}""")
            if m < 3: a("v_add_f32 v3, v3, v2")
        a(f"v_add_f32 v{vCO}, v{vCO}, v{vCO}")
        def packH(k, Qb):
            for m in range(4): a(f"v_cvt_pk_bf16_f32 v{H + 4 * k + m}, v{Qb + 2 * m}, v{Qb + 2 * m + 1}")
        packH(0, Q0); packH(1, Q1)
        for k in range(2, 8):
            cur, prev = (Q1, Q0) if k % 2 == 0 else (Q0, Q1)
            for m in range(4):
                a(f"v_pk_fma_f32 {vr(prev + 2 * m, 2)}, {vr(vCO, 2)}, {vr(cur + 2 * m, 2)}, {vr(prev + 2 * m, 2)} op_sel_hi:[0,1,1] neg_lo:[0,0,1] neg_hi:[0,0,1]")
            packH(k, prev)
        setexec(0xffffffff, 0)
        a(f"v_or_b32 v{H}, s{sONE}, v13")
        fullexec()
    genH()
    for m in ["quad_perm:[1,0,3,2]", "quad_perm:[2,3,0,1]", "row_half_mirror"]:
        a(f"v_add_f32_dpp v{vSW}, v{vSW}, v{vSW} {m} row_mask:0xf bank_mask:0xf")
    vS, vQ, vR = CH, CH + 1, CH + 2
    a(f"v_mov_b32 v{vS}, 0\nv_mov_b32 v{vQ}, 0\nv_mov_b32 v{vR}, 0")
    stamp(2)
    for cb in range(7):
        a(f"s_waitcnt vmcnt({7 - cb if cb < 6 else 0})")
        a(f"ds_write_b128 v{vLW}, {vr(XR + 4 * cb, 4)} offset:{2048 * cb}")
        for m in range(4):
            x = XR + 4 * cb + m
            a(f"""v_dot2c_f32_bf16 v{vS}, s{sONE}, v{x}
            v_dot2c_f32_bf16 v{vQ}, v{x}, v{x}
            v_dot2c_f32_bf16 v{vR}, v{WRr + 4 * cb + m}, v{x}""")
    stamp(3)
    for m in ["quad_perm:[1,0,3,2]", "quad_perm:[2,3,0,1]", "row_half_mirror"]:
        for v in (vS, vQ, vR):
            a(f"v_add_f32_dpp v{v}, v{v}, v{v} {m} row_mask:0xf bank_mask:0xf")
    ST4 = CH + 4
    a(f"""v_mul_f32 v{ST4 + 2}, {f2u(-1 / 448):#x}, v{vS}
    v_mov_b32 v2, {f2u(1e-5):#x}
    v_fmac_f32 v2, {f2u(1 / 448):#x}, v{vQ}
    v_fma_f32 v2, -v{ST4 + 2}, v{ST4 + 2}, v2
    v_rsq_f32 v{ST4}, v2
    v_fmac_f32 v{vR}, v{ST4 + 2}, v{vSW}
    v_lshrrev_b32 v3, 1, v0
    v_and_b32 v3, 0x7c, v3
    v_mul_f32 v{vR}, v{vR}, v{ST4}
    ds_write_b32 v3, v{ST4} offset:{L_RS}
    v_ashrrev_i32 v2, 31, v{vR}
    v_or_b32 v2, 0x80000000, v2
    v_xor_b32 v2, v2, v{vR}
    v_or_b32 v2, 0x7ff, v2
    v_xor_b32 v2, v2, v{vROW}
    v_mov_b32 v3, 0""")
    setexec(0x01010101, 0x01010101)
    a(f"""ds_max_u32 v3, v2 offset:{L_KEY}
    s_cmp_lg_u32 s{sW}, s{sCG}
    s_cbranch_scc1 L_nost
    v_mul_f32 v{ST4 + 1}, v{ST4 + 2}, v{ST4}
    v_mov_b32 v{ST4 + 3}, s{sNON}
    v_and_b32 v2, 127, v{vROW}
    v_lshlrev_b32 v2, 8, v2
    v_lshrrev_b32 v13, 7, v{vROW}
    v_lshl_add_u32 v2, v13, 4, v2
    s_mov_b32 s{sT}, {O_ST}
    buffer_store_dwordx4 {vr(ST4, 4)}, v2, s[{WS}:{WS + 3}], s{sT} offen sc1
    L_nost:
    s_lshl_b32 s{sT}, s{sI}, 8
    s_lshl_b32 s{sT + 1}, s{sP}, 2
    s_add_u32 s{sT}, s{sT}, s{sT + 1}
    s_add_u32 s{sT}, s{sT}, {O_CERT}
    v_mov_b32 v15, s{sNON}""")
    setexec(1, 0)
    a(f"buffer_store_dword v15, v3, s[{WS}:{WS + 3}], s{sT} offen sc1")
    fullexec()
    a("s_waitcnt lgkmcnt(0)\ns_barrier")
    stamp(4)
    if stamps: a("s_waitcnt lgkmcnt(0)")
    a(f"""s_cmp_lg_u32 s{sW}, 3
    s_cbranch_scc1 L_nokey
    ds_read_b32 v14, v3 offset:{L_KEY}
    v_mov_b32 v15, s{sNON}
    v_lshlrev_b32 v2, 15, v{vL}
    s_lshl_b32 s{sT}, s{sCG}, 6
    s_add_u32 s{sT}, s{sT}, s{sP}
    s_lshl_b32 s{sT}, s{sT}, 7
    s_add_u32 s{sT}, s{sT}, {O_KEY}""")
    setexec(3, 0)
    a(f"""s_waitcnt lgkmcnt(0)
    buffer_store_dwordx2 v[14:15], v2, s[{WS}:{WS + 3}], s{sT} offen sc1""")
    fullexec()
    a("L_nokey:")
    ACC = CH; RS = CH + 16; AR = XR; NSL = 12; XT = XR + 48
    a(f"s_cmp_ge_u32 s{sI}, 14\ns_cbranch_scc1 L_nogemm")
    def rd(n):
        kk, rt = n >> 1, n & 1
        a(f"ds_read_b128 {vr(AR + 4 * (n % NSL), 4)}, v{vLR1 if kk & 1 else vLR0} offset:{(rt * 14 + kk) * 1024}")
    PRE = 8
    for n in range(PRE): rd(n)
    a(f"v_lshlrev_b32 v2, 4, v{vG}")
    for kk in range(14):
        rem = min(28, 2 * kk + PRE) - (2 * kk + 2)
        if kk == 13: pass
        a(f"s_waitcnt lgkmcnt({rem + (2 if kk > 10 else 0)})")
        for rt in range(2):
            A = vr(AR + 4 * ((2 * kk + rt) % NSL), 4)
            for cs in range(2):
                d = ACC + 8 * rt + 4 * cs
                c = "0" if kk == 0 else vr(d, 4)
                a(f"v_mfma_f32_16x16x32_bf16 {vr(d, 4)}, {A}, {vr(Bc(kk) + 4 * cs, 4)}, {c}")
            n = 2 * kk + PRE + rt
            if n < 28: rd(n)
            if kk == 10: a(f"ds_read_b128 {vr(RS + 4 * rt, 4)}, v2 offset:{L_RS + 64 * rt}")
    a("s_waitcnt lgkmcnt(0)")
    T = CH + 24
    for h in range(2):
        a(f"v_pk_mul_f32 {vr(T + 2 * h, 2)}, {vr(RS + 2 * h, 2)}, {vr(ACC + 2 * h, 2)}")
    for h in range(2):
        a(f"v_pk_mul_f32 {vr(T + 4 + 2 * h, 2)}, {vr(RS + 2 * h, 2)}, {vr(ACC + 4 + 2 * h, 2)}")
    for h in range(2):
        a(f"v_pk_fma_f32 {vr(T + 2 * h, 2)}, {vr(RS + 4 + 2 * h, 2)}, {vr(ACC + 8 + 2 * h, 2)}, {vr(T + 2 * h, 2)}")
    for h in range(2):
        a(f"v_pk_fma_f32 {vr(T + 4 + 2 * h, 2)}, {vr(RS + 4 + 2 * h, 2)}, {vr(ACC + 12 + 2 * h, 2)}, {vr(T + 4 + 2 * h, 2)} neg_lo:[1,0,0] neg_hi:[1,0,0]")
    a(f"s_cmp_lg_u32 s{sP}, 0\ns_cbranch_scc1 L_nofix")
    setexec(0xffff, 0)
    a(f"v_mul_f32 v{T}, v{RS}, v{ACC}\nv_mul_f32 v{T + 4}, v{RS + 4}, v{ACC + 8}")
    fullexec()
    a("L_nofix:")
    for m in range(4): a(f"v_cvt_pk_bf16_f32 v{RS + m}, v{T + 2 * m}, v{T + 2 * m + 1}")
    a(f"""v_mfma_f32_16x16x32_bf16 {vr(ACC, 4)}, {vr(RS, 4)}, {vr(M1, 4)}, 0
    v_mfma_f32_16x16x32_bf16 {vr(ACC + 4, 4)}, {vr(RS, 4)}, {vr(M1 + 4, 4)}, 0""")
    for m in range(4): a(f"v_cvt_pk_bf16_f32 v{T + m}, v{ACC + m}, v{ACC + 4 + m}")
    a(f"""buffer_store_dwordx4 {vr(T, 4)}, v{vGA}, s[{WS}:{WS + 3}], s{sGOFF} offen sc1""")
    a("L_nogemm:")
    stamp(5)
    a(f"s_cmp_ge_u32 s{sQ}, 28\ns_cbranch_scc1 L_nop2")
    vT, vOA, vSA, vKA, vCA, vFA = 6, 7, 8, 9, 10, 11
    XF = B; GG = B + 16; FR = B + 32; AF = B + 40; ACC2 = B + 72; SG = B + 88; KY = B + 92; CT = B + 94; K1 = B + 96; TM = B + 100
    a(f"""v_and_b32 v2, 31, v0
    s_lshl_b32 s{sT}, s{sW}, 9
    s_add_u32 s{sT}, s{sT}, s{sT1}
    v_lshl_add_u32 v{vT}, v2, 4, s{sT}
    v_mul_u32_u24 v{vOA}, 896, v{vT}
    v_and_b32 v3, 32, v0
    v_add_u32 v{vOA}, v{vOA}, v3
    s_lshl_b32 s{sT + 2}, s{sJ}, 6
    buffer_load_dwordx4 {vr(XT, 4)}, v{vOA}, s[{X}:{X + 3}], s{sT + 2} offen
    buffer_load_dwordx4 {vr(XT + 4, 4)}, v{vOA}, s[{X}:{X + 3}], s{sT + 2} offen offset:16
    v_and_b32 v{vSA}, 127, v{vT}
    v_lshlrev_b32 v{vSA}, 8, v{vSA}
    v_lshrrev_b32 v13, 7, v{vT}
    v_lshl_add_u32 v{vSA}, v13, 4, v{vSA}
    s_mov_b32 s{sT + 3}, {O_ST}
    v_lshlrev_b32 v{vKA}, 7, v{vL}
    s_lshl_b32 s{sT + 4}, s{sTAU}, 13
    s_add_u32 s{sT + 4}, s{sT + 4}, {O_KEY}""")
    a(f"""v_and_b32 v13, 3, v2
    v_lshrrev_b32 v14, 3, v2
    v_lshl_add_u32 v13, v14, 2, v13
    v_bfe_u32 v14, v2, 2, 1
    v_lshl_add_u32 v13, v14, 4, v13
    s_lshl_b32 s{sT}, s{sJ}, 5
    v_add_u32 v13, s{sT}, v13
    s_mov_b32 s{sT + 5}, s{sT1}
    s_lshl_b32 s{sT + 6}, s{sJ}, 1
    s_sub_u32 s{sT + 6}, s{sT + 6}, 1
    s_cmp_lt_u32 s{sJ}, 7
    s_cbranch_scc1 L_gdir
    v_sub_u32 v13, 448, v13
    s_sub_u32 s{sT + 5}, 16, s{sT1}
    s_and_b32 s{sT + 5}, s{sT + 5}, 15
    s_sub_u32 s{sT + 6}, 24, s{sT + 6}
    L_gdir:
    v_cmp_eq_u32 s[{sT + 8}:{sT + 9}], 0, v13
    v_mul_u32_u24 v14, 112, v3
    v_lshl_add_u32 v{vFA}, v13, 2, v14
    s_mul_i32 s{sT + 5}, s{sT + 5}, 57344
    s_mul_i32 s{sT}, s{sW}, 14336
    s_add_u32 s{sT + 5}, s{sT + 5}, s{sT}
    s_add_u32 s{sT + 5}, s{sT + 5}, {O_G - 4}
    s_add_u32 s{sT + 7}, s{sT + 5}, 7168
    v_min_u32 v14, 2, v{vG}
    v_add_u32 v14, s{sT + 6}, v14
    v_max_i32 v14, 0, v14
    v_lshlrev_b32 v14, 8, v14
    v_lshl_add_u32 v{vCA}, v{vC}, 2, v14
    s_lshl_b32 s{sT + 6}, s{sW}, 6
    s_add_u32 s{sT + 6}, s{sT + 6}, {O_CERT}""")
    a(f"""L_pst:
    buffer_load_dwordx4 {vr(SG, 4)}, v{vSA}, s[{WS}:{WS + 3}], s{sT + 3} offen sc1""")
    spin_check("L_pstd")
    a(f"""s_waitcnt vmcnt(0)
    v_cmp_ne_u32 vcc, s{sNON}, v{SG + 3}
    s_cbranch_vccnz L_pst
    L_pstd:""")
    stamp(6)
    a(f"""buffer_load_dwordx2 {vr(KY, 2)}, v{vKA}, s[{WS}:{WS + 3}], s{sT + 4} offen sc1
    buffer_load_dword v{CT}, v{vCA}, s[{WS}:{WS + 3}], s{sT + 6} offen sc1""")
    def gcalc(m0, m1):
        for m in range(m0, m1):
            x = XF + 2 * m; g = GG + 2 * m
            a(f"""v_lshlrev_b32 v{x}, 16, v{XT + m}
            v_and_b32 v{x + 1}, 0xffff0000, v{XT + m}
            v_pk_fma_f32 {vr(TM, 2)}, {vr(x, 2)}, {vr(K1, 2)}, {vr(K1, 2)} op_sel:[0,0,1] op_sel_hi:[1,0,1]
            v_pk_fma_f32 {vr(g, 2)}, {vr(x, 2)}, {vr(SG, 2)}, {vr(SG, 2)} op_sel:[0,0,1] op_sel_hi:[1,0,1]
            v_exp_f32 v{TM}, v{TM}
            v_exp_f32 v{TM + 1}, v{TM + 1}
            v_pk_add_f32 {vr(TM, 2)}, {vr(TM, 2)}, 1.0 op_sel_hi:[1,0]
            v_rcp_f32 v{TM}, v{TM}
            v_rcp_f32 v{TM + 1}, v{TM + 1}
            v_pk_mul_f32 {vr(g, 2)}, {vr(g, 2)}, {vr(TM, 2)}""")
    a(f"v_mul_f32 v{K1}, {f2u(-LOG2E):#x}, v{SG}\nv_mul_f32 v{K1 + 1}, {f2u(-LOG2E):#x}, v{SG + 1}")
    gcalc(0, 8)
    a(f"""s_branch L_pkc
    L_pk:
    buffer_load_dwordx2 {vr(KY, 2)}, v{vKA}, s[{WS}:{WS + 3}], s{sT + 4} offen sc1
    buffer_load_dword v{CT}, v{vCA}, s[{WS}:{WS + 3}], s{sT + 6} offen sc1""")
    spin_check("L_pkd")
    a(f"""L_pkc:
    s_waitcnt vmcnt(0)
    v_xor_b32 v2, s{sNON}, v{KY + 1}
    v_xor_b32 v3, s{sNON}, v{CT}
    v_or_b32 v2, v2, v3
    v_cmp_ne_u32 vcc, 0, v2
    s_cbranch_vccnz L_pk
    L_pkd:""")
    stamp(7)
    a("L_pg:")
    for n in range(8):
        a(f"buffer_load_dword v{FR + n}, v{vFA}, s[{WS}:{WS + 3}], s{sT + 5 + 2 * (n >> 2)} offen offset:{896 * (n & 3)} sc1")
    wave_umax(KY, sKEY)
    spin_check("L_pgd")
    a(f"""s_waitcnt vmcnt(0)
    v_max3_u32 v2, v{FR}, v{FR + 1}, v{FR + 2}
    v_max3_u32 v3, v{FR + 3}, v{FR + 4}, v{FR + 5}
    v_max3_u32 v2, v2, v{FR + 6}, v{FR + 7}
    v_max_u32 v2, v2, v3
    v_cmp_eq_u32 vcc, -1, v2
    s_andn2_b64 vcc, vcc, s[{sT + 8}:{sT + 9}]
    s_cbranch_scc1 L_pg
    L_pgd:""")
    stamp(8)
    a(f"s_mov_b64 exec, s[{sT + 8}:{sT + 9}]")
    for n in range(8): a(f"v_mov_b32 v{FR + n}, 0")
    fullexec()
    a(f"""v_lshlrev_b32 v2, 4, v{vL}
    s_lshl_b32 s{sT}, s{sW}, 11
    v_add_u32 v3, s{sT}, v2
    ds_write_b128 v3, {vr(FR, 4)} offset:{L_FS}
    ds_write_b128 v3, {vr(FR + 4, 4)} offset:{L_FS + 1024}
    s_and_b32 s{sIDX}, s{sKEY}, 0x7ff
    s_xor_b32 s{sIDX}, s{sIDX}, 0x7ff
    v_cmp_ne_u32 vcc, s{sIDX}, v{vT}
    s_waitcnt lgkmcnt(0)
    s_barrier""")
    for k in range(8): a(f"ds_read_b128 {vr(AF + 4 * k, 4)}, v2 offset:{L_FS + 1024 * k}")
    for k in range(8):
        a(f"s_waitcnt lgkmcnt({7 - k})")
        a(f"v_mfma_f32_32x32x16_bf16 {vr(ACC2, 16)}, {vr(AF + 4 * k, 4)}, {vr(H + 4 * k, 4)}, {'0' if k == 0 else vr(ACC2, 16)}")
    for m in range(8):
        a(f"v_pk_fma_f32 {vr(GG + 2 * m, 2)}, {vr(ACC2 + 2 * m, 2)}, {vr(GG + 2 * m, 2)}, {vr(XF + 2 * m, 2)}")
        a(f"v_cvt_pk_bf16_f32 v{FR + m}, v{GG + 2 * m}, v{GG + 2 * m + 1}")
    a(f"""s_mov_b64 exec, vcc
    buffer_store_dwordx4 {vr(FR, 4)}, v{vOA}, s[{OUT}:{OUT + 3}], s{sT + 2} offen
    buffer_store_dwordx4 {vr(FR + 4, 4)}, v{vOA}, s[{OUT}:{OUT + 3}], s{sT + 2} offen offset:16""")
    stamp(9)
    a(f"""s_and_b32 s{sT}, s{sIDX}, 15
    s_cmp_lg_u32 s{sT}, s{sT1}
    s_cbranch_scc1 L_fin""")
    a(f"""s_not_b64 exec, vcc
    s_cbranch_execz L_norow
    v_and_b32 v3, 32, v0
    v_lshlrev_b32 v3, 1, v3""")
    for m in range(4):
        a(f"ds_write_b128 v3, {vr(ACC2 + 4 * m, 4)} offset:{L_ROW + 16 * m}")
        a(f"ds_write_b128 v3, {vr(XF + 4 * m, 4)} offset:{L_ROW + 128 + 16 * m}")
    a(f"""v_mov_b32 v3, 0
    ds_write_b64 v3, {vr(SG, 2)} offset:{L_ROW + 256}
    L_norow:""")
    fullexec()
    PR = AF; SEL = AF + 16; D = AF + 20
    a(f"""v_lshrrev_b32 v2, 1, v{vL}
    v_mul_u32_u24 v2, 1792, v2
    v_and_b32 v3, 1, v0
    v_lshl_add_u32 v{vFA}, v3, 4, v2
    s_lshl_b32 s{sT}, s{sJ}, 7
    s_lshl_b32 s{sT + 1}, s{sW}, 5
    s_add_u32 s{sT}, s{sT}, s{sT + 1}
    s_add_u32 s{sT + 3}, s{sT}, {O_P}
    s_add_u32 s{sT + 4}, s{sT + 3}, {32 * 1792}
    s_add_u32 s{sT + 5}, s{sT + 3}, {64 * 1792}
    s_add_u32 s{sT + 6}, s{sT + 3}, {96 * 1792}
    v_lshl_add_u32 v3, v3, 2, v{vG}
    s_lshl_b32 s{sT}, s{sW}, 3
    v_add_u32 v13, s{sT}, v3
    v_lshlrev_b32 v14, 2, v13
    v_lshrrev_b32 v2, 2, v{vC}
    v_and_b32 v3, 1, v2
    v_lshlrev_b32 v3, 4, v3
    v_mov_b32 v15, 0x3f80
    v_lshlrev_b32 v15, v3, v15
    v_cmp_gt_u32 vcc, 2, v2
    v_cndmask_b32 v{SEL}, 0, v15, vcc
    v_cndmask_b32 v{SEL + 1}, v15, 0, vcc
    v_mov_b32 v{PR + 12}, 0
    v_mov_b32 v{PR + 13}, 0
    v_mov_b32 v{PR + 14}, s{sNON}
    s_and_b32 s{sT}, s{sKEY}, 0xfffff800
    s_or_b32 s{sT}, s{sT}, 0x400
    s_ashr_i32 s{sT + 1}, s{sT}, 31
    s_not_b32 s{sT + 1}, s{sT + 1}
    s_or_b32 s{sT + 1}, s{sT + 1}, 0x80000000
    s_xor_b32 s{sT}, s{sT}, s{sT + 1}
    v_mov_b32 v15, s{sT}
    v_mul_f32 v15, {f2u(-LOG2E):#x}, v15
    v_exp_f32 v15, v15
    v_add_f32 v15, 1.0, v15
    v_rcp_f32 v15, v15
    s_waitcnt lgkmcnt(0)
    s_barrier
    v_mov_b32 v3, 0
    ds_read_b32 v{TM}, v14 offset:{L_ROW}
    ds_read_b32 v{TM + 1}, v14 offset:{L_ROW + 128}
    ds_read_b64 {vr(SG, 2)}, v3 offset:{L_ROW + 256}
    s_mul_i32 s{sT + 7}, s{sIDX}, 896
    s_add_u32 s{sT + 7}, s{sT + 7}, s{sT + 2}
    v_lshlrev_b32 v13, 1, v13
    L_pp:""")
    for n in range(4):
        if n == 3: setexec(0xffffffff, 0)
        a(f"buffer_load_dwordx3 {vr(PR + 4 * n, 3)}, v{vFA}, s[{WS}:{WS + 3}], s{sT + 3 + n} offen sc1")
    fullexec()
    spin_check("L_ppd")
    a(f"""s_waitcnt vmcnt(0)
    v_xor_b32 v2, s{sNON}, v{PR + 2}
    v_xor_b32 v3, s{sNON}, v{PR + 6}
    v_xor_b32 v{D}, s{sNON}, v{PR + 10}
    v_xor_b32 v{D + 1}, s{sNON}, v{PR + 14}
    v_or3_b32 v2, v2, v3, v{D}
    v_or_b32 v2, v2, v{D + 1}
    v_cmp_ne_u32 vcc, 0, v2
    s_cbranch_vccnz L_pp
    L_ppd:""")
    stamp(10)
    for n in range(4):
        a(f"v_mfma_f32_16x16x16_bf16 {vr(D, 4)}, {vr(SEL, 2)}, {vr(PR + 4 * n, 2)}, {'0' if n == 0 else vr(D, 4)}")
    a(f"s_waitcnt lgkmcnt(0)\nv_fma_f32 v2, v{TM + 1}, v{SG}, v{SG + 1}")
    for m in ["quad_perm:[2,3,0,1]", "row_ror:4", "row_ror:8"]:
        a(f"v_add_f32_dpp v{D}, v{D}, v{D} {m} row_mask:0xf bank_mask:0xf")
    a(f"""v_fmac_f32 v2, v{D}, v15
    v_mul_f32 v3, {f2u(-LOG2E):#x}, v2
    v_exp_f32 v3, v3
    v_mul_f32 v2, v2, v{TM}
    v_add_f32 v3, 1.0, v3
    v_rcp_f32 v3, v3
    v_fma_f32 v2, v2, v3, v{TM + 1}
    v_cvt_pk_bf16_f32 v2, v2, v2""")
    setexec(0x00030003, 0x00030003)
    a(f"buffer_store_short v2, v13, s[{OUT}:{OUT + 3}], s{sT + 7} offen")
    stamp(11)
    a("s_branch L_fin")
    a(f"""L_nop2:
    s_cmp_lg_u32 s2, 255
    s_cbranch_scc1 L_fin
    v_lshlrev_b32 v2, 4, v0
    v_min_u32 v3, 111, v0
    v_lshlrev_b32 v3, 2, v3
    s_mov_b32 s{sT}, {O_CERT}
    s_mov_b32 s{sT + 1}, {O_FCERT}
    L_jp:
    s_sleep 8
    buffer_load_dwordx4 v[20:23], v2, s[{WS}:{WS + 3}], s{sT} offen sc1
    buffer_load_dword v24, v3, s[{WS}:{WS + 3}], s{sT + 1} offen sc1""")
    spin_check("L_jpd")
    a("s_waitcnt vmcnt(0)")
    for m in range(5): a(f"v_xor_b32 v{20 + m}, s{sNON}, v{20 + m}")
    a(f"""v_or3_b32 v20, v20, v21, v22
    v_or3_b32 v20, v20, v23, v24
    v_cmp_ne_u32 vcc, 0, v20
    s_cbranch_vccnz L_jp
    L_jpd:
    s_barrier
    s_cmp_lg_u32 s{sW}, 0
    s_cbranch_scc1 L_fin
    v_mov_b32 v3, 0""")
    setexec(1, 0)
    a(f"buffer_store_dword v15, v3, s[{WS}:{WS + 3}], 0 offen sc1")
    a("L_fin:")
    write_stamps(12)
    a("L_end:\ns_endpgm")

    WM, WD = 20, 24
    sU, sFT = 30, 31
    WF = 16; DR = 44; DF = 60; CS = 76; XFr = 80; STg = 108; AC = 112; HF = 116; Y = 120; KYf = 152
    a(f"""L_ffn:
    s_and_b32 s{sT}, s{sW}, 1
    s_lshl_b32 s{sT}, s{sT}, 3
    s_add_u32 s{sT}, s{sT}, 56
    s_load_dwordx2 s[{WM}:{WM + 1}], s[0:1], s{sT}
    s_load_dwordx2 s[{WD}:{WD + 1}], s[0:1], 72
    s_mov_b32 s{WM + 2}, {448 * 3584}
    s_mov_b32 s{WM + 3}, 0x20000
    s_mov_b32 s{WD + 2}, {448 * 3584}
    s_mov_b32 s{WD + 3}, 0x20000
    s_sub_u32 s{sU}, s2, 256
    s_and_b32 s{sTAU}, s2, 7
    s_mul_i32 s{sFT}, s{sTAU}, 14
    s_lshr_b32 s{sT + 1}, s{sU}, 3
    s_add_u32 s{sFT}, s{sFT}, s{sT + 1}
    v_lshrrev_b32 v{vG}, 4, v{vL}
    v_and_b32 v{vC}, 15, v0
    v_lshrrev_b32 v2, 1, v{vL}
    v_mul_u32_u24 v2, 3584, v2
    v_and_b32 v3, 1, v0
    v_lshl_add_u32 v6, v3, 4, v2
    s_lshr_b32 s{sT + 2}, s{sW}, 1
    s_mul_i32 s{sT + 3}, s{sT + 2}, {224 * 3584}
    s_lshl_b32 s{sT + 4}, s{sFT}, 5
    s_add_u32 s{sT + 3}, s{sT + 3}, s{sT + 4}
    s_mul_i32 s{sT + 5}, s{sW}, 7168
    v_mul_u32_u24 v7, 3584, v{vG}
    v_min_u32 v2, 13, v{vC}
    v_lshl_add_u32 v7, v2, 4, v7
    s_mul_i32 s{sT + 6}, s{sFT}, {16 * 896}
    s_mul_i32 s{sT + 7}, s{sW}, 224
    s_add_u32 s{sT + 6}, s{sT + 6}, s{sT + 7}
    s_mov_b32 m0, s{sT + 5}
    s_waitcnt lgkmcnt(0)""")
    stamp(1)
    a(f"s_load_dword s{sNON}, s[{WS}:{WS + 1}], 0")
    for n in range(7):
        a(f"buffer_load_dwordx4 v6, s[{WM}:{WM + 3}], s{sT + 3} offen lds")
        if n < 6: a(f"s_add_u32 s{sT + 3}, s{sT + 3}, {32 * 3584}\ns_add_u32 m0, m0, 1024")
    for r in range(4):
        a(f"buffer_load_dwordx4 {vr(DR + 4 * r, 4)}, v7, s[{WD}:{WD + 3}], s{sT + 6} offen offset:{896 * r}")
    a(f"""v_lshlrev_b32 v8, 5, v{vC}
    v_lshl_add_u32 v8, v{vG}, 4, v8
    s_mul_i32 s{sT + 8}, s{sFT}, 1792
    s_mul_i32 s{sT + 9}, s{sW}, 448
    s_add_u32 s{sT + 8}, s{sT + 8}, s{sT + 9}
    s_add_u32 s{sT + 8}, s{sT + 8}, {O_P}
    s_waitcnt lgkmcnt(0)
    v_mov_b32 v{Y}, s{sNON}
    v_mov_b32 v{Y + 1}, s{sNON}
    v_mov_b32 v{Y + 2}, s{sNON}
    v_mov_b32 v{Y + 3}, s{sNON}
    s_add_u32 s{sNON}, s{sNON}, 1""")
    setexec(0x3fff3fff, 0)
    a(f"buffer_store_dwordx4 {vr(Y, 4)}, v8, s[{WS}:{WS + 3}], s{sT + 8} offen sc1")
    fullexec()
    a(f"""s_barrier
    s_cmp_lg_u32 s{sW}, 0
    s_cbranch_scc1 L_fnc
    v_mov_b32 v2, s{sNON}
    v_mov_b32 v3, 0
    s_lshl_b32 s{sT}, s{sU}, 2
    s_add_u32 s{sT}, s{sT}, {O_FCERT}""")
    setexec(1, 0)
    a(f"buffer_store_dword v2, v3, s[{WS}:{WS + 3}], s{sT} offen sc1")
    fullexec()
    a(f"""L_fnc:
    v_lshlrev_b32 v9, 3, v{vC}
    v_lshl_add_u32 v9, v{vG}, 8, v9
    v_add_u32 v9, s{sT + 5}, v9
    v_lshlrev_b32 v10, 7, v{vL}
    s_lshl_b32 s{sT + 4}, s{sTAU}, 13
    s_add_u32 s{sT + 4}, s{sT + 4}, {O_KEY}
    v_lshlrev_b32 v11, 4, v{vG}
    s_lshl_b32 s{sT}, s{sW}, 6
    v_add_u32 v12, s{sT}, v11
    v_and_b32 v13, 3, v0
    v_lshl_add_u32 v13, v13, 2, v11
    s_mul_i32 s{sT + 7}, s{sT + 2}, 448
    s_mov_b32 s{sT + 10}, 0x05040100
    s_mov_b32 s{sT + 11}, 0x07060302
    v_mov_b32 v14, 0""")
    for m in range(4): a(f"v_mov_b32 v{XFr + m}, s{sONE}")
    a("s_waitcnt vmcnt(0)")
    stamp(2)
    for n in range(7):
        for hh in range(2):
            a(f"ds_read_b64_tr_b16 {vr(WF + 4 * n + 2 * hh, 2)}, v9 offset:{1024 * n + 128 * hh}")
    for Tt in range(8):
        q = Tt >> 1; sel = sT + 10 + (Tt & 1)
        a(f"v_perm_b32 v{DF + 2 * Tt}, v{DR + 4 + q}, v{DR + q}, s{sel}")
        a(f"v_perm_b32 v{DF + 2 * Tt + 1}, v{DR + 12 + q}, v{DR + 8 + q}, s{sel}")
    a("s_waitcnt lgkmcnt(0)")
    for n in range(7):
        a(f"v_mfma_f32_16x16x32_bf16 {vr(CS, 4)}, {vr(WF + 4 * n, 4)}, {vr(XFr, 4)}, {'0' if n == 0 else vr(CS, 4)}")
    stamp(3)
    a(f"""L_fk:
    buffer_load_dwordx2 {vr(KYf, 2)}, v10, s[{WS}:{WS + 3}], s{sT + 4} offen sc1""")
    spin_check("L_fkd")
    a(f"""s_waitcnt vmcnt(0)
    v_cmp_ne_u32 vcc, s{sNON}, v{KYf + 1}
    s_cbranch_vccnz L_fk
    L_fkd:""")
    stamp(4)
    wave_umax(KYf, sKEY)
    a(f"""s_and_b32 s{sIDX}, s{sKEY}, 0x7ff
    s_xor_b32 s{sIDX}, s{sIDX}, 0x7ff
    s_mul_i32 s{sT}, s{sIDX}, 896
    s_add_u32 s{sT}, s{sT}, s{sT + 7}
    s_and_b32 s{sT + 1}, s{sIDX}, 127
    s_lshl_b32 s{sT + 1}, s{sT + 1}, 8
    s_lshr_b32 s{sT + 3}, s{sIDX}, 7
    s_lshl_b32 s{sT + 3}, s{sT + 3}, 4
    s_add_u32 s{sT + 1}, s{sT + 1}, s{sT + 3}
    s_add_u32 s{sT + 1}, s{sT + 1}, {O_ST}""")
    setexec(0x00010001, 0x00010001)
    for n in range(7):
        a(f"buffer_load_dwordx4 {vr(XFr + 4 * n, 4)}, v11, s[{X}:{X + 3}], s{sT} offen offset:{64 * n}")
    fullexec()
    a(f"""L_fs:
    buffer_load_dwordx4 {vr(STg, 4)}, v14, s[{WS}:{WS + 3}], s{sT + 1} offen sc1""")
    spin_check("L_fsd")
    a(f"""s_waitcnt vmcnt(0)
    v_cmp_ne_u32 vcc, s{sNON}, v{STg + 3}
    s_cbranch_vccnz L_fs
    L_fsd:""")
    stamp(5)
    for m in range(4): a(f"v_mul_f32 v{AC + m}, v{STg + 2}, v{CS + m}")
    for n in range(7):
        a(f"v_mfma_f32_16x16x32_bf16 {vr(AC, 4)}, {vr(WF + 4 * n, 4)}, {vr(XFr + 4 * n, 4)}, {vr(AC, 4)}")
    a(f"v_mul_f32 v15, {f2u(-LOG2E):#x}, v{STg}")
    setexec(0x00010001, 0x00010001)
    a(f"ds_write_b128 v12, {vr(AC, 4)} offset:{L_FEX}")
    fullexec()
    a(f"""s_waitcnt lgkmcnt(0)
    s_barrier
    v_add_u32 v13, {L_FEX}, v13
    ds_read2_b32 v[2:3], v13 offset0:0 offset1:32
    ds_read2_b32 v[6:7], v13 offset0:16 offset1:48
    v_mul_f32 v{STg}, v{STg}, v{STg}
    s_waitcnt lgkmcnt(1)
    v_add_f32 v2, v2, v3
    v_mul_f32 v3, v15, v2
    v_exp_f32 v3, v3
    s_waitcnt lgkmcnt(0)
    v_add_f32 v6, v6, v7
    v_add_f32 v3, 1.0, v3
    v_rcp_f32 v3, v3
    v_mul_f32 v2, v2, v6
    v_mul_f32 v2, v2, v{STg}
    v_mul_f32 v2, v2, v3""")
    for m in range(4): a(f"v_mov_b32_dpp v{AC + m}, v2 quad_perm:[{m},{m},{m},{m}] row_mask:0xf bank_mask:0xf")
    a(f"v_cvt_pk_bf16_f32 v{HF}, v{AC}, v{AC + 1}\nv_cvt_pk_bf16_f32 v{HF + 1}, v{AC + 2}, v{AC + 3}")
    for Tt in range(8):
        a(f"v_mfma_f32_16x16x16_bf16 {vr(Y + 4 * Tt, 4)}, {vr(HF, 2)}, {vr(DF + 2 * Tt, 2)}, 0")
    a(f"""v_mov_b32 v{AC + 2}, s{sNON}
    v_cvt_pk_bf16_f32 v{AC}, v{Y}, v{Y + 4}
    v_cvt_pk_bf16_f32 v{AC + 1}, v{Y + 8}, v{Y + 12}""")
    setexec(0x3fff0000, 0)
    a(f"""v_cvt_pk_bf16_f32 v{AC}, v{Y + 16}, v{Y + 20}
    v_cvt_pk_bf16_f32 v{AC + 1}, v{Y + 24}, v{Y + 28}""")
    setexec(0x3fff3fff, 0)
    a(f"buffer_store_dwordx4 {vr(AC, 4)}, v8, s[{WS}:{WS + 3}], s{sT + 8} offen sc1")
    stamp(6)
    a("s_branch L_fin")
    a("L_codeend:")
    return single(hazard.fix(a.text(), verbose="-v" in sys.argv), 368, 256, lds=LDS, vgpr=256, sgpr=96)

if __name__ == "__main__":
    open("k1.s", "w").write(gen())
    open("k1_st.s", "w").write(gen(stamps=True))
```

```python
import sys, re
from asmlib import *
import hazard
O_STAMP = 0x180000
def probe_body(k, lo, hi, mult, nw, usemin=False):
    a = Asm()
    a(f"""s_cmp_ge_u32 s2, 1
    s_cbranch_scc1 P_end
    s_load_dwordx2 s[16:17], s[0:1], 96
    s_mov_b32 s18, 0x200000
    s_mov_b32 s19, 0x20000
    v_lshlrev_b32 v1, 6, v0
    v_mov_b32 v2, -1
    v_mov_b32 v3, {-1 if usemin else 0}
    v_mov_b32 v6, v0
    s_mov_b32 s20, {O_STAMP}
    s_mov_b32 s21, 0
    s_waitcnt lgkmcnt(0)
    P_loop:
    buffer_load_dword v4, v1, s[16:19], s20 offen
    buffer_load_dword v5, v1, s[16:19], s20 offen offset:{4 * k}
    s_waitcnt vmcnt(0)
    v_min_u32 v2, v2, v4
    v_cmp_le_u32 vcc, {lo}, v6
    v_cmp_gt_u32 s[22:23], s24, v6
    s_and_b64 vcc, vcc, s[22:23]
    v_cmp_ne_u32 s[22:23], 0, v5
    s_and_b64 vcc, vcc, s[22:23]
    v_cndmask_b32 v5, v3, v5, vcc
    { 'v_min_u32' if usemin else 'v_max_u32' } v3, v3, v5
    v_add_u32 v6, 64, v6
    s_add_u32 s20, s20, 4096
    s_add_u32 s21, s21, 1
    s_cmp_lt_u32 s21, {nw // 64}
    s_cbranch_scc1 P_loop""".replace("s_mov_b32 s21, 0", f"s_mov_b32 s21, 0\ns_mov_b32 s24, {hi}"))
    for m in ["row_shr:1 row_mask:0xf", "row_shr:2 row_mask:0xf", "row_shr:4 row_mask:0xf", "row_shr:8 row_mask:0xf", "row_bcast:15 row_mask:0xa", "row_bcast:31 row_mask:0xc"]:
        a(f"v_min_u32_dpp v2, v2, v2 {m} bank_mask:0xf")
        a(f"{'v_min_u32_dpp' if usemin else 'v_max_u32_dpp'} v3, v3, v3 {m} bank_mask:0xf")
    a(f"""v_readlane_b32 s26, v2, 63
    v_readlane_b32 s27, v3, 63
    s_sub_u32 s26, s27, s26
    s_min_u32 s26, s26, 5000
    s_mul_i32 s26, s26, {mult}
    s_memrealtime s[28:29]
    s_waitcnt lgkmcnt(0)
    P_spin:
    s_memrealtime s[30:31]
    s_waitcnt lgkmcnt(0)
    s_sub_u32 s32, s30, s28
    s_cmp_lt_u32 s32, s26
    s_cbranch_scc1 P_spin
    P_end:
    s_endpgm""")
    return hazard.fix(a.text())
def make(src, dst, k, lo, hi, mult=20, nw=1472, usemin=False):
    s = open(src).read()
    K = KN + "_kernel"
    m = re.search(r"; @launch grid=(.*)\n", s)
    s = s.replace(m.group(0), f"; @launch kernel={K} grid={m.group(1)}\n; @launch kernel=probe_kernel grid=(1,1,1) block=(64,1,1) lds=0\n")
    s = s.replace('.section .rodata,"a"\n', kernel_text("probe_kernel", probe_body(k, lo, hi, mult, nw, usemin)) + '.section .rodata,"a"\n') + kd("probe_kernel", 16, 40)
    open(dst, "w").write(s)
if __name__ == "__main__":
    src = sys.argv[1]
    make(src, "pr_base.s", 0, 0, 1024, mult=0)
    make(src, "pr_m0.s", 0, 0, 1024)
    make(src, "pr_m1.s", 1, 0, 1024)
    make(src, "pr_m3.s", 3, 0, 1024)
    make(src, "pr_m11.s", 11, 0, 1024)
    make(src, "pr_f2.s", 2, 1024, 1472)
```

```python
import sys, re
from asmlib import *
import hazard
O_STAMP = 0x180000
def probe_body(k, nw, mult, base=0):
    a = Asm()
    a(f"""s_cmp_ge_u32 s2, 1
    s_cbranch_scc1 P_end
    s_load_dwordx2 s[16:17], s[0:1], 96
    s_mov_b32 s18, 0x200000
    s_mov_b32 s19, 0x20000
    v_lshlrev_b32 v1, 6, v0
    v_mov_b32 v3, 0
    s_mov_b32 s20, {O_STAMP}
    s_mov_b32 s21, 0
    s_waitcnt lgkmcnt(0)
    P_loop:
    buffer_load_dword v4, v1, s[16:19], s20 offen offset:{4 * base}
    buffer_load_dword v5, v1, s[16:19], s20 offen offset:{4 * k}
    s_waitcnt vmcnt(0)
    v_sub_u32 v5, v5, v4
    v_add_u32 v3, v3, v5
    s_add_u32 s20, s20, 4096
    s_add_u32 s21, s21, 1
    s_cmp_lt_u32 s21, {nw // 64}
    s_cbranch_scc1 P_loop""")
    for m in ["row_shr:1 row_mask:0xf", "row_shr:2 row_mask:0xf", "row_shr:4 row_mask:0xf", "row_shr:8 row_mask:0xf", "row_bcast:15 row_mask:0xa", "row_bcast:31 row_mask:0xc"]:
        a(f"v_add_u32_dpp v3, v3, v3 {m} bank_mask:0xf")
    a(f"""v_cvt_f32_u32 v3, v3
    v_mul_f32 v3, {mult / (nw // 64 * 64)}, v3
    v_cvt_u32_f32 v3, v3
    v_readlane_b32 s26, v3, 63
    s_min_u32 s26, s26, 100000
    s_memrealtime s[28:29]
    s_waitcnt lgkmcnt(0)
    P_spin:
    s_memrealtime s[30:31]
    s_waitcnt lgkmcnt(0)
    s_sub_u32 s32, s30, s28
    s_cmp_lt_u32 s32, s26
    s_cbranch_scc1 P_spin
    P_end:
    s_endpgm""")
    return hazard.fix(a.text())
def mb_body(ptr_off, nbytes_total, nl, share, flags=""):
    a = Asm()
    sh = {1: 0, 2: 1, 4: 2, 8: 3, 16: 4, 32: 5}[share]
    a(f"""s_memrealtime s[20:21]
    s_load_dwordx2 s[8:9], s[0:1], {ptr_off}
    s_load_dwordx2 s[12:13], s[0:1], 96
    s_cmp_ge_u32 s2, 256
    s_cbranch_scc1 M_end
    s_mov_b32 s10, {nbytes_total}
    s_mov_b32 s11, 0x20000
    s_mov_b32 s14, 0x200000
    s_mov_b32 s15, 0x20000
    s_and_b32 s16, s2, 7
    s_lshr_b32 s17, s2, {3 + sh}
    s_mul_i32 s16, s16, {32 // share}
    s_add_u32 s16, s16, s17
    s_mul_i32 s16, s16, {nl * 4096}
    v_lshlrev_b32 v1, 4, v0
    s_waitcnt lgkmcnt(0)
    s_memrealtime s[22:23]""")
    for i in range(nl):
        a(f"buffer_load_dwordx4 v[{4 + 4 * i}:{7 + 4 * i}], v1, s[8:11], s16 offen {flags}\ns_add_u32 s16, s16, 4096")
    a(f"""s_waitcnt vmcnt({nl - 1})
    s_memrealtime s[24:25]
    s_waitcnt vmcnt(0)
    s_memrealtime s[26:27]
    s_waitcnt lgkmcnt(0)
    v_mov_b32 v4, s20
    v_mov_b32 v5, s22
    v_mov_b32 v6, s24
    v_mov_b32 v7, s26
    v_lshrrev_b32 v2, 6, v0
    s_lshl_b32 s16, s2, 2
    v_add_u32 v2, s16, v2
    v_lshlrev_b32 v2, 6, v2
    s_mov_b32 s17, {O_STAMP}
    s_mov_b64 exec, 1
    buffer_store_dwordx4 v[4:7], v2, s[12:15], s17 offen
    M_end:
    s_endpgm""")
    return hazard.fix(a.text())
def make(real, dst, mb, k, mult=20, nw=1024, base=0):
    s = open(real).read()
    K = KN + "_kernel"
    m = re.search(r"; @launch grid=(.*)\n", s)
    s = s.replace(m.group(0), f"; @launch kernel=mb_kernel grid=(256,1,1) block=(256,1,1) lds=0\n; @launch kernel={K} grid={m.group(1)}\n; @launch kernel=probe_kernel grid=(1,1,1) block=(64,1,1) lds=0\n")
    s = s.replace('.section .rodata,"a"\n', kernel_text("probe_kernel", probe_body(k, nw, mult, base)) + kernel_text("mb_kernel", mb) + '.section .rodata,"a"\n') + kd("probe_kernel", 16, 40) + kd("mb_kernel", 128, 48)
    open(dst, "w").write(s)
if __name__ == "__main__":
    mbx = mb_body(0, 1835008, 7, 4)
    make("k1.s", "q_base.s", mbx, 2, mult=0)
    make("k1.s", "q_x_first.s", mbx, 2, mult=50, base=1)
    make("k1.s", "q_x_all.s", mbx, 3, mult=50, base=1)
    mbs = mb_body(8, 8 << 20, 8, 1)
    make("k1.s", "q_s_all.s", mbs, 3, mult=50, base=1)
    make("k1.s", "q_s_all_nt.s", mb_body(8, 8 << 20, 8, 1, "nt"), 3, mult=50, base=1)
    make("k1.s", "q_x_all_nt.s", mb_body(0, 1835008, 7, 4, "nt"), 3, mult=50, base=1)
```

```python
from probe2 import *
def mb_code(kb, pf):
    a = Asm()
    a(f"""s_memrealtime s[20:21]
    s_load_dwordx2 s[12:13], s[0:1], 96
    s_cmp_ge_u32 s2, 256
    s_cbranch_scc1 M_end
    s_mov_b32 s14, 0x200000
    s_mov_b32 s15, 0x20000""")
    if pf:
        a(f"""s_cmp_ge_u32 s2, 16
        s_cbranch_scc1 M_nopf
        s_getpc_b64 s[40:41]
        v_lshlrev_b32 v2, 6, v0
        v_min_u32 v2, {kb * 1024}, v2
        global_load_dword v20, v2, s[40:41]
        M_nopf:""")
    a("""s_waitcnt lgkmcnt(0)
    s_memrealtime s[22:23]""")
    for i in range(kb * 128): a("v_add3_u32 v3, v3, v3, v3")
    a(f"""s_memrealtime s[24:25]
    s_waitcnt lgkmcnt(0)
    v_mov_b32 v4, s20
    v_mov_b32 v5, s22
    v_mov_b32 v6, s24
    v_mov_b32 v7, s24
    v_lshrrev_b32 v2, 6, v0
    s_lshl_b32 s16, s2, 2
    v_add_u32 v2, s16, v2
    v_lshlrev_b32 v2, 6, v2
    s_mov_b32 s17, {O_STAMP}
    s_mov_b64 exec, 1
    buffer_store_dwordx4 v[4:7], v2, s[12:15], s17 offen
    M_end:
    s_endpgm""")
    return a.text()
make("k1.s", "r_4.s", mb_code(4, False), 2, mult=30, base=1)
make("k1.s", "r_4pf.s", mb_code(4, True), 2, mult=30, base=1)
make("k1.s", "r_16.s", mb_code(16, False), 2, mult=30, base=1)
make("k1.s", "r_16pf.s", mb_code(16, True), 2, mult=30, base=1)
make("k1.s", "r_karg.s", mb_code(1, False), 1, mult=50, base=0)
```

```python
import sys, re
from asmlib import *
import hazard
O_STAMP = 0x1A0000
def probe_body(k, lo, hi, mult, nw, usemin=False):
    a = Asm()
    a(f"""s_cmp_ge_u32 s2, 1
    s_cbranch_scc1 P_end
    s_load_dwordx2 s[16:17], s[0:1], 96
    s_mov_b32 s18, 0x200000
    s_mov_b32 s19, 0x20000
    v_lshlrev_b32 v1, 6, v0
    v_mov_b32 v2, -1
    v_mov_b32 v3, {-1 if usemin else 0}
    v_mov_b32 v6, v0
    s_mov_b32 s20, {O_STAMP}
    s_mov_b32 s21, 0
    s_waitcnt lgkmcnt(0)
    P_loop:
    buffer_load_dword v4, v1, s[16:19], s20 offen
    buffer_load_dword v5, v1, s[16:19], s20 offen offset:{4 * k}
    s_waitcnt vmcnt(0)
    v_cmp_gt_u32 vcc, 992, v6
    v_cndmask_b32 v4, v2, v4, vcc
    v_min_u32 v2, v2, v4
    v_cmp_le_u32 vcc, {lo}, v6
    v_cmp_gt_u32 s[22:23], s24, v6
    s_and_b64 vcc, vcc, s[22:23]
    v_cmp_ne_u32 s[22:23], 0, v5
    s_and_b64 vcc, vcc, s[22:23]
    v_cndmask_b32 v5, v3, v5, vcc
    { 'v_min_u32' if usemin else 'v_max_u32' } v3, v3, v5
    v_add_u32 v6, 64, v6
    s_add_u32 s20, s20, 4096
    s_add_u32 s21, s21, 1
    s_cmp_lt_u32 s21, {nw // 64}
    s_cbranch_scc1 P_loop""".replace("s_mov_b32 s21, 0", f"s_mov_b32 s21, 0\ns_mov_b32 s24, {hi}"))
    for m in ["row_shr:1 row_mask:0xf", "row_shr:2 row_mask:0xf", "row_shr:4 row_mask:0xf", "row_shr:8 row_mask:0xf", "row_bcast:15 row_mask:0xa", "row_bcast:31 row_mask:0xc"]:
        a(f"v_min_u32_dpp v2, v2, v2 {m} bank_mask:0xf")
        a(f"{'v_min_u32_dpp' if usemin else 'v_max_u32_dpp'} v3, v3, v3 {m} bank_mask:0xf")
    a(f"""v_readlane_b32 s26, v2, 63
    v_readlane_b32 s27, v3, 63
    s_sub_u32 s26, s27, s26
    s_min_u32 s26, s26, 5000
    s_mul_i32 s26, s26, {mult}
    s_memrealtime s[28:29]
    s_waitcnt lgkmcnt(0)
    P_spin:
    s_memrealtime s[30:31]
    s_waitcnt lgkmcnt(0)
    s_sub_u32 s32, s30, s28
    s_cmp_lt_u32 s32, s26
    s_cbranch_scc1 P_spin
    P_end:
    s_endpgm""")
    return hazard.fix(a.text())
def make(src, dst, k, lo, hi, mult=20, nw=1472, usemin=False):
    s = open(src).read()
    K = KN + "_kernel"
    m = re.search(r"; @launch grid=(.*)\n", s)
    s = s.replace(m.group(0), f"; @launch kernel={K} grid={m.group(1)}\n; @launch kernel=probe_kernel grid=(1,1,1) block=(64,1,1) lds=0\n")
    s = s.replace('.section .rodata,"a"\n', kernel_text("probe_kernel", probe_body(k, lo, hi, mult, nw, usemin)) + '.section .rodata,"a"\n') + kd("probe_kernel", 16, 40)
    open(dst, "w").write(s)
if __name__ == "__main__":
    src = sys.argv[1]
    make(src, "pr_base.s", 0, 0, 992, mult=0, nw=1024)
    make(src, "pr_key.s", 4, 0, 256, nw=1024)
    make(src, "pr_gst.s", 5, 256, 768, nw=1024)
    make(src, "pr_pst.s", 6, 768, 992, nw=1024)
    make(src, "pr_out.s", 9, 0, 768, nw=1024)
    make(src, "pr_fin.s", 11, 0, 768, nw=1024)
```

```python
import sys, struct
from asmlib import *
import hazard

O_KEY = 0x10000; O_ST = 0x20000; O_P = 0x40000; O_G = 0x80000
O_STAMP = 0x1A0000; WS_SIZE = 0x180000
GROW = 1024; GT1 = 64 * GROW
XBYTES = 2048 * 896
WBYTES = 448 * 3584
L_EO = 0; L_WR = 0; L_KEY = 16384; L_KEY2 = 16388; L_ROW = 16896; L_FS = 18432
L_FEX = 57344; L_FROW = 57344 + 1024; LDS = 57344 + 1024 + 4096
NWG = 248
SPIN = 0x10000
def f2u(x): return struct.unpack("<I", struct.pack("<f", x))[0]
def bf(x):
    u = f2u(x)
    return (u + 0x7fff + ((u >> 16) & 1)) >> 16
LOG2E = 1.4426950408889634
LN2 = 0.6931471805599453
def vr(b, n=1): return f"v{b}" if n == 1 else f"v[{b}:{b + n - 1}]"
FULL = "row_mask:0xf bank_mask:0xf"
RED = ["row_shr:1 row_mask:0xf", "row_shr:2 row_mask:0xf", "row_shr:4 row_mask:0xf", "row_shr:8 row_mask:0xf", "row_bcast:15 row_mask:0xa", "row_bcast:31 row_mask:0xc"]
CHEB = "op_sel_hi:[0,1,1] neg_lo:[0,0,1] neg_hi:[0,0,1]"

DOC = """;
; Workgroup roles (id = 8*q + group; ids that share id%8 work on the same rows, which only helps L2 locality):
;   KEY 0x10000 [8 copies][64] {score|row, tag}   ST 0x20000 [row] {rstd', offs', -mean, tag}
;   P   0x40000 [56][112] {4 bf16, tag}           G  0x80000 [t1][p][tile][parity][tag, 15 x (c,s) bf16]
"""

def gen(stamps=False, psleep=0, gsleep=0, ppsleep=0, spin=SPIN, ks=5, ilv=10, pre=6, glate=0, glate2=10, mgap=7, mgap2=8,
        keyp=12, dep=2, n0=4, pfrows=160, pt=True, plate=1, kill='', ktoff=8, esc='', eearly=True, ppos=(2, 4)):
    a = Asm()
    X, WS, OUT, WR, PF, WD = 12, 16, 20, 24, 4, 8
    sW, sNON, sP, sPAR, sMSK, sTAU, sALT, sQ, sSTR = 28, 29, 30, 31, 32, 33, 34, 35, 36
    sTH, sT1, sM, sIDX, sCNT, sKEY, sONE = 37, 38, 39, 40, 41, 42, 43
    sT = 44
    sSTO, sKO, sG0, sG1, sGA, sCLS = 52, 53, 55, 56, 57, 59
    sSGL, sSGH, sC2, sLG = 24, 25, 26, 92
    sRO = 94; sGR = 98; sWP = 101
    sSTAMP = 60
    vL, vG, vC, vN = 1, 4, 5, 254
    srd = lambda r: f"s[{r}:{r + 3}]"
    def c(t): a.lines.append("    ; " + t)
    def stamp(k):
        if stamps: a(f"s_memrealtime s[{sSTAMP + 2 * k}:{sSTAMP + 2 * k + 1}]")
    def setexec(lo, hi):
        if hi == 0 and lo < 0x80000000: a(f"s_mov_b64 exec, {lo:#x}")
        else: a(f"s_mov_b32 exec_lo, {lo:#x}\ns_mov_b32 exec_hi, {hi:#x}")
    def fullexec(): a("s_mov_b64 exec, -1")
    def spin_check(lab_out):
        a(f"s_add_u32 s{sCNT}, s{sCNT}, 1\ns_cmp_gt_u32 s{sCNT}, {spin}\ns_cbranch_scc1 {lab_out}")
    def emit(lst, n):
        for _ in range(min(n, len(lst))): a(lst.pop(0))
    def L(s): return [x.strip() for x in s.split("\n") if x.strip()]
    def sleep(n): return f"s_sleep {n}" if n else ""
    def mix(work, mem, gap):
        cnt = 0
        while work:
            if cnt % gap == gap - 1 and mem: emit(mem, 1)
            emit(work, 1); cnt += 1
        emit(mem, 99)

    vOA, vOM, vOM0, vSA, vKA, vPA, vFA, vLWr, vLRd = (243, 251), (244, 252), 245, 246, 247, 248, 249, 240, 241
    AF = 192; HT = 128; PR = 224; TV = 90
    V1 = dict(n=1, XT=152, SG=160, KY=164, RSB=96, H=112, XF=128, GG=24, FR=176, ACC=16)
    V2 = dict(n=2, XT=160, SG=84, KY=88, RSB=176, H=96, XF=128, GG=16, FR=64, ACC=48)
    sOD, sOM, sNI = sT, sT + 1, sT + 3
    sPA, sGAM, sFIN, sOA = 4, 8, 9, 10
    so = lambda k: "0" if k == 0 else f"s{sRO + k}"
    def tile_addr(rt, side, r):
        if side == 0: return f"v{vOA[rt]}", so(r)
        if rt == 0 and r == 0: return f"v{vOM0}", "0"
        return f"v{vOM[rt]}", so(3 - r)
    def xloads(V):
        l = []
        for rt in range(V["n"]):
            for side in range(2):
                for r in range(4):
                    va, so_ = tile_addr(rt, side, r)
                    l.append(f"buffer_load_dword v{V['XT'] + 8 * rt + 4 * side + r}, {va}, {srd(X)}, {so_} offen")
        return l
    def ldst(V): return f"buffer_load_dwordx4 {vr(V['SG'], 4)}, v{vSA}, {srd(WS)}, s{sSTO} offen sc1"
    def preA(V):
        t0 = 144
        l = L(f"""s_add_u32 s{sT + 3}, s{sTH}, s{sW}
        s_lshl4_add_u32 s{sT}, s{sT + 3}, s{sT1}
        v_lshl_add_u32 v{t0}, v{vG}, 9, s{sT}
        s_mul_i32 s{sT + 1}, s{sM}, 56
        v_max_u32 v2, 2, v{vC}
        s_sub_u32 s{sT + 1}, s{sT + 1}, 8
        v_lshl_add_u32 v2, v2, 2, s{sT + 1}
        s_movk_i32 s{sT + 2}, 896
        v_mad_u32_u24 v{vOA[0]}, v{t0}, s{sT + 2}, v2
        v_sub_u32 v{vOM[0]}, {(2048 - 384) * 896 + 892}, v{vOA[0]}
        v_sub_u32 v{vSA}, 0, v{t0}
        v_and_b32 v{vSA}, 0x7ff, v{vSA}
        v_sub_u32 v2, 892, v2
        v_mad_u32_u24 v{vOM0}, v{vSA}, s{sT + 2}, v2
        v_and_b32 v2, 3, v0
        v_lshl_add_u32 v{t0}, v2, 7, v{t0}""")
        if V["n"] == 2:
            l += L(f"""v_bfe_u32 v3, v0, 3, 1
            v_lshl_add_u32 v{t0}, v3, 6, v{t0}
            v_add_u32 v{vOA[1]}, {64 * 896}, v{vOA[0]}
            v_subrev_u32 v{vOM[1]}, {64 * 896}, v{vOM[0]}
            s_mov_b32 s{sMSK}, 0xffff0000""")
        l += L(f"""v_bfe_i32 v2, v0, 2, 1
        v_xor_b32 v{t0}, v{t0}, v2
        v_sub_u32 v{t0}, v{t0}, v2
        v_and_b32 v{vSA}, 127, v{t0}
        v_lshlrev_b32 v{vSA}, 8, v{vSA}
        v_bfe_u32 v2, v{t0}, 7, 4
        v_lshl_add_u32 v{vSA}, v2, 4, v{vSA}
        s_mov_b32 s{sSTO}, {O_ST}""")
        for k in range(1, 4): l.append(f"s_mov_b32 s{sRO + k}, {k * 114688}")
        return l
    def preB(V):
        return L(f"""v_lshlrev_b32 v{vKA}, {ks}, v{vC}
        s_lshl2_add_u32 s{sKO}, s{sTAU}, s{sW}
        s_lshl_b32 s{sKO}, s{sKO}, {4 + ks}
        s_add_u32 s{sKO}, s{sKO}, {O_KEY}
        s_mov_b32 s{OUT + 2}, s{X + 2}
        s_mov_b32 s{OUT + 3}, 0x20000
        v_and_b32 v3, 32, v0
        v_mul_u32_u24 v3, {(4 * GROW - 128) // 32}, v3
        v_lshl_add_u32 v{vFA}, v{vL}, 2, v3
        s_lshl2_add_u32 s{sG0}, s{sT1}, s{sW}
        s_lshl_b32 s{sG0}, s{sG0}, 7
        s_add_u32 s{sG0}, s{sG0}, s{sM}
        s_lshl_b32 s{sG0}, s{sG0}, 7
        s_add_u32 s{sG0}, s{sG0}, {O_G}
        s_add_u32 s{sG1}, s{sG0}, {8 * GROW}
        s_mov_b32 s{sLG}, {f2u(-LOG2E):#x}
        v_lshlrev_b32 v{vLRd}, 4, v{vL}
        v_bfe_u32 v2, v0, 4, 1
        v_lshlrev_b32 v2, 10, v2
        v_lshl_add_u32 v2, v{vC}, 4, v2
        v_bfe_u32 v3, v0, 5, 1
        v_lshl_add_u32 v2, v3, 8, v2
        v_lshrrev_b32 v3, 6, v0
        v_lshl_add_u32 v{vLWr}, v3, 11, v2""")
    def genH(V):
        t1_, t2_, t3_, c1, c2 = 145, 146, 147, 148, 150
        Q0_, Q1_ = HT, HT + 8
        l = L(f"""s_add_u32 s{sT + 3}, s{sTH}, s{sW}
        v_lshl_add_u32 v{t1_}, v{vC}, 3, s{sT + 3}
        v_cvt_f32_u32 v{t1_}, v{t1_}
        v_mul_f32 v{t1_}, {f2u(-1 / 128):#x}, v{t1_}
        v_lshlrev_b32 v{t3_}, 2, v{vG}
        v_cvt_f32_u32 v{t3_}, v{t3_}""")
        for rt in range(V["n"]):
            H = V["H"] + 16 * rt
            if rt: l.append(f"v_add_f32 v{t1_}, {f2u(-4 / 128):#x}, v{t1_}")
            l += L(f"""v_mul_f32 v3, v{t3_}, v{t1_}
            v_mul_f32 v{t2_}, {f2u(16.0):#x}, v{t1_}
            v_cos_f32 v{c1}, v{t1_}
            v_cos_f32 v{c2}, v{t2_}""")
            for m in range(2):
                l += L(f"""v_cos_f32 v{Q0_ + 2 * m}, v3
                v_sin_f32 v{Q0_ + 2 * m + 1}, v3
                v_add_f32 v2, v3, v{t2_}
                v_cos_f32 v{Q1_ + 2 * m}, v2
                v_sin_f32 v{Q1_ + 2 * m + 1}, v2""")
                if m == 0: l.append(f"v_add_f32 v3, v3, v{t1_}")
            l += [f"v_add_f32 v{c1}, v{c1}, v{c1}", f"v_add_f32 v{c2}, v{c2}, v{c2}"]
            for m in range(2, 4):
                for Qb in (Q0_, Q1_): l.append(f"v_pk_fma_f32 {vr(Qb + 2 * m, 2)}, {vr(c1, 2)}, {vr(Qb + 2 * m - 2, 2)}, {vr(Qb + 2 * m - 4, 2)} {CHEB}")
            def packH(k, Qb):
                for m in range(4): l.append(f"v_cvt_pk_bf16_f32 v{H + 4 * k + m}, v{Qb + 2 * m}, v{Qb + 2 * m + 1}")
            packH(0, Q0_); packH(1, Q1_)
            for k in range(2, 4):
                cur, prev = (Q1_, Q0_) if k % 2 == 0 else (Q0_, Q1_)
                for m in range(4): l.append(f"v_pk_fma_f32 {vr(prev + 2 * m, 2)}, {vr(c2, 2)}, {vr(cur + 2 * m, 2)}, {vr(prev + 2 * m, 2)} {CHEB}")
                packH(k, prev)
        l += [f"s_lshl_b32 s{sT}, s{sW}, 31", f"s_or_b32 s{sT}, s{sT}, s{sONE}"]
        l.append("s_mov_b64 exec, 0xffff\n" + "".join(f"v_mov_b32 v{V['H'] + 16 * rt}, s{sT}\n" for rt in range(V["n"])) + "s_mov_b64 exec, -1")
        return l
    def psetup():
        c("addresses for the routed row's partial sums (used only if this tile holds that row)")
        a(f"""s_and_b32 s{sT + 2}, s{sW}, 1
        s_mul_i32 s{sGAM}, s{sM}, 7
        s_sub_u32 s{sT + 5}, 105, s{sGAM}
        s_cmp_ge_u32 s{sW}, 2
        s_cselect_b32 s{sGAM}, s{sT + 5}, s{sGAM}
        s_add_u32 s{sGAM}, s{sT + 2}, s{sGAM}
        s_mul_i32 s{sT + 5}, s{sGAM}, 147
        s_lshr_b32 s{sT + 5}, s{sT + 5}, 12
        s_mul_i32 s{sPA}, s{sT + 5}, 224
        s_lshl3_add_u32 s{sPA}, s{sGAM}, s{sPA}
        s_bitcmp1_b32 s{sGAM}, 0
        s_cselect_b32 s{sT + 5}, 216, 0
        s_add_u32 s{sPA}, s{sPA}, s{sT + 5}
        s_add_u32 s{sPA}, s{sPA}, {O_P}
        s_add_u32 s{sPA + 1}, s{sPA}, {16 * 1792}
        s_add_u32 s{sPA + 2}, s{sPA}, {32 * 1792}
        s_add_u32 s{sPA + 3}, s{sPA}, {48 * 1792}
        v_lshrrev_b32 v2, 2, v{vL}
        v_mul_u32_u24 v2, 1792, v2
        v_and_b32 v13, 3, v0
        s_sub_u32 s{sT + 5}, 3, s{sT + 2}
        v_min_u32 v13, s{sT + 5}, v13
        v_lshl_add_u32 v{vPA}, v13, 4, v2
        v_mov_b32 v{PR + 12}, 0
        v_mov_b32 v{PR + 13}, 0
        v_mov_b32 v{PR + 14}, s{sNON}
        v_lshl_add_u32 v13, v13, 3, v{vG}
        v_lshlrev_b32 v12, 1, v13
        s_lshl_b32 s{sOA}, s{sGAM}, 3""")
    def ploads(ex="-1"):
        for n in range(4):
            if n == 3: a("s_mov_b32 exec_hi, 0")
            a(f"buffer_load_dwordx3 {vr(PR + 4 * n, 3)}, v{vPA}, {srd(WS)}, s{sPA + n} offen sc1")
        a(f"s_mov_b64 exec, {ex}")
    def unpack(V):
        l = []
        for k in range(8 * V["n"]):
            o = V["XF"] + 8 * (k >> 2) + (k & 3)
            l += [f"v_and_b32 v{o}, s{sMSK}, v{V['XT'] + k}", f"v_lshlrev_b32 v{o + 4}, 16, v{V['XT'] + k}"]
        return l
    def phase2(V, gl, unp):
        n = V["n"]; x_ = str(n)
        XT, SG, KY, RSB, XF, GG, FR, ACC2 = [V[k] for k in ("XT", "SG", "KY", "RSB", "XF", "GG", "FR", "ACC")]
        def gl_make():
            l = [f"s_mov_b64 exec, 0xffff\nbuffer_load_dwordx2 {vr(KY, 2)}, v{vKA}, {srd(WS)}, s{sKO} offen sc1\ns_mov_b64 exec, -1"]
            for k in range(8): l.append(f"buffer_load_dword v{FR + k}, v{vFA}, {srd(WS)}, s{sG0 + (k >> 2)} offen offset:{GROW * (k & 3)} sc1")
            return l
        c("row statistics valid?")
        a("v_mov_b32 v3, 0")
        stamp(6)
        a(f"""s_branch L_psc{x_}
        L_ps{x_}:
        {sleep(psleep)}
        {ldst(V)}""")
        spin_check("L_psd" + x_)
        a(f"""s_waitcnt vmcnt(0)
        L_psc{x_}:
        v_cmp_ne_u32 vcc, s{sNON}, v{SG + 3}
        s_cbranch_vccnz L_ps{x_}
        L_psd{x_}:""")
        stamp(15)
        c("gate z/(1+2^z), z = -log2(e)*xn (the -ln2 that undoes the scale is folded into stage 1); G and keys are fetched meanwhile")
        step = 0; pend = []; cur = []
        for rt in range(n):
            for side in range(2):
                rb = RSB + 8 * side
                bc = []
                for r in range(4):
                    ln = 8 * rt + 4 * side + r
                    bc += [f"v_mov_b32_dpp v{rb + r}, v{SG} row_newbcast:{ln} {FULL}", f"v_mov_b32_dpp v{rb + 4 + r}, v{SG + 1} row_newbcast:{ln} {FULL}"]
                for h in range(2):
                    for par in range(2):
                        if step == gl:
                            stamp(7); cur = gl_make()
                        emit(cur, 1)
                        if par == 0:
                            emit(bc, 4); emit(unp, 4)
                        o = 16 * rt + 8 * side + 4 * par + 2 * h
                        x = XF + o; g = GG + o; tm = AF + 2 * (step & 1)
                        step += 1
                        a(f"""v_pk_fma_f32 {vr(g, 2)}, {vr(x, 2)}, {vr(rb + 2 * h, 2)}, {vr(rb + 4 + 2 * h, 2)}
                        v_exp_f32 v{tm}, v{g}
                        v_exp_f32 v{tm + 1}, v{g + 1}""")
                        emit(cur, 1)
                        emit(pend, 1)
                        a(f"""v_pk_add_f32 {vr(tm, 2)}, {vr(tm, 2)}, 1.0 op_sel_hi:[1,0]
                        v_rcp_f32 v{tm}, v{tm}
                        v_rcp_f32 v{tm + 1}, v{tm + 1}""")
                        emit(cur, 1)
                        pend.append(f"v_pk_mul_f32 {vr(g, 2)}, {vr(g, 2)}, {vr(tm, 2)}")
        emit(cur, 99)
        emit(pend, 9)
        stamp(13)
        a(f"s_branch L_pgc{x_}\nL_pg{x_}:")
        emit(gl_make(), 99)
        spin_check("L_pgd" + x_)
        c("check the tags of G (lane 0 of every 64-byte piece) and of the keys; stage G in LDS")
        a(f"""L_pgc{x_}:
        s_waitcnt vmcnt(8)
        v_cmp_ne_u32 vcc, s{sNON}, v{KY + 1}
        s_and_b32 s{sT}, vcc_lo, 0xffff
        s_andn2_b64 exec, 0xffff, vcc
        ds_max_u32 v3, v{KY} offset:{L_KEY2}
        s_mov_b64 exec, -1
        s_waitcnt vmcnt(4)
        ds_write_b128 v{vLWr}, {vr(FR, 4)} offset:{L_FS}
        v_bitop3_b32 v2, v{FR}, v{FR + 1}, s{sNON} bitop3:0x7e
        v_bitop3_b32 v8, v{FR + 2}, v{FR + 3}, s{sNON} bitop3:0x7e
        s_waitcnt vmcnt(2)
        v_bitop3_b32 v9, v{FR + 4}, v{FR + 5}, s{sNON} bitop3:0x7e
        v_or3_b32 v2, v2, v8, v9
        s_waitcnt vmcnt(0)
        ds_write_b128 v{vLWr}, {vr(FR + 4, 4)} offset:{L_FS + 512}
        v_bitop3_b32 v10, v{FR + 6}, v{FR + 7}, s{sNON} bitop3:0x7e
        v_or_b32 v2, v2, v10
        v_cmp_ne_u32 vcc, 0, v2
        s_or_b32 vcc_lo, vcc_lo, vcc_hi
        s_and_b32 vcc_lo, vcc_lo, 0x00010001
        s_or_b32 vcc_lo, vcc_lo, s{sT}
        s_cbranch_scc0 L_pgd{x_}
        {sleep(gsleep)}
        s_waitcnt lgkmcnt(0)
        s_branch L_pg{x_}
        L_pgd{x_}:""")
        stamp(8)
        a("s_waitcnt lgkmcnt(0)\ns_barrier")
        c("128-point stage, then out = x + y*gate for the direct and the mirrored columns")
        for k in range(8): a(f"ds_read_b128 {vr(AF + 4 * k, 4)}, v{vLRd} offset:{L_FS + 1024 * k}")
        a(f"ds_read_b32 v{KY}, v3 offset:{L_KEY2}")
        sPM = sT + 4; SH = FR
        a(f"s_mov_b32 s{sPM}, 0xfffcfffc\ns_mov_b32 s{sPM + 1}, s{sPM}")
        def mf(rt, k):
            d = ACC2 + 8 * rt + 4 * (k & 1)
            return f"v_mfma_f32_16x16x32_bf16 {vr(d, 4)}, {vr(V['H'] + 16 * rt + 4 * (k >> 1), 4)}, {vr(AF + 4 * k, 4)}, {'0' if k < 2 else vr(d, 4)}"
        for k in range(8):
            a(f"s_waitcnt lgkmcnt({8 - k})")
            a(mf(0, k))
        idxc = L(f"""s_waitcnt lgkmcnt(0)
        v_readfirstlane_b32 s{sKEY}, v{KY}
        s_lshl4_add_u32 s{sT + 2}, s{sTH}, s{sT1}
        s_andn2_b32 s{sIDX}, 0x7ff, s{sKEY}
        s_sub_u32 s{sNI}, 0, s{sIDX}
        s_xor_b32 s{sOD}, s{sIDX}, s{sT + 2}
        s_xor_b32 s{sOM}, s{sNI}, s{sT + 2}
        s_and_b32 s{sOD}, s{sOD}, {0x4f if n == 1 else 0x0f}
        s_and_b32 s{sOM}, s{sOM}, {0x4f if n == 1 else 0x0f}
        s_cmp_ge_u32 s{sW}, 2
        s_cselect_b32 s{sFIN}, s{sOM}, s{sOD}""")
        def calc(rt, side):
            l = []; o = 16 * rt + 8 * side
            if side == 0:
                for r in range(4): l.append(f"v_mov_b32_dpp v{SH + 4 * rt + r}, v{ACC2 + 8 * rt + 4 + r} row_shr:1 {FULL}")
            for h in range(2):
                for par in range(2):
                    src = SH + 4 * rt + 2 * h if (par and side == 0) else ACC2 + 8 * rt + 4 * par + 2 * h
                    l.append(f"v_pk_fma_f32 {vr(GG + o + 4 * par + 2 * h, 2)}, {vr(src, 2)}, {vr(GG + o + 4 * par + 2 * h, 2)}, {vr(XF + o + 4 * par + 2 * h, 2)}")
                for j in range(2):
                    r = 2 * h + j
                    l.append(f"v_cvt_pk_bf16_f32 v{XT + 8 * rt + 4 * side + r}, v{GG + o + 4 + r}, v{GG + o + r}")
            return l
        def stores(rt, side):
            l = []
            for r in range(4):
                va, so_ = tile_addr(rt, side, r)
                l.append(f"buffer_store_dword v{XT + 8 * rt + 4 * side + r}, {va}, {srd(OUT)}, {so_} offen")
            return l
        def maybe_p(k):
            if k != ppos[n - 1]: return
            c("waves that will redo the routed row fetch its inputs")
            a(f"""s_cmp_lg_u32 s{sFIN}, 0
            s_cbranch_scc1 L_nopl{x_}
            s_mov_b64 exec, -1
            s_mul_i32 s11, s{sIDX}, 896
            s_add_u32 s{sOA}, s{sOA}, s11
            buffer_load_ushort v{TV + 1}, v12, {srd(X)}, s{sOA} offen
            s_and_b32 s11, s{sIDX}, 127
            s_lshl_b32 s11, s11, 8
            s_lshr_b32 s{sT + 2}, s{sIDX}, 7
            s_lshl4_add_u32 s11, s{sT + 2}, s11
            s_add_u32 s11, s11, {O_ST}
            buffer_load_dwordx2 {vr(TV + 2, 2)}, off, {srd(WS)}, s11 sc1""")
            if not (plate & n): ploads(f"s[{sPM}:{sPM + 1}]")
            a(f"L_nopl{x_}:")
        if n == 1:
            emit(idxc, 8)
            c0 = calc(0, 1); c1 = calc(0, 0)
            emit(c0, 99); emit(c1, 4)
            a(f"s_mov_b64 exec, s[{sPM}:{sPM + 1}]")
            st = stores(0, 1)
            while st: emit(st, 1); emit(c1, 2)
            emit(idxc, 99)
            maybe_p(1)
            emit(stores(0, 0), 99)
            maybe_p(2)
        else:
            w = idxc[:8] + calc(0, 1)
            for k in range(8):
                a(mf(1, k)); emit(w, 2)
            c1 = calc(0, 0); c3 = calc(1, 0)
            emit(c1, 4); emit(idxc[8:], 9); emit(c3, 4)
            a(f"s_mov_b64 exec, s[{sPM}:{sPM + 1}]")
            for k, (st, nx) in enumerate(((stores(0, 1), c1), (stores(0, 0), calc(1, 1)), (stores(1, 1), c3), (stores(1, 0), []))):
                maybe_p(k)
                while st: emit(st, 1); emit(nx, 2)
            maybe_p(4)
        fullexec()
        stamp(9)
        if stamps: a(f"s_mov_b32 s{sSTAMP + 2 * 14}, s{sCNT}")
        c("tiles that hold the routed row redo it with the FFN update")
        a(f"""s_mul_i32 s{sT + 2}, s{sOD}, s{sOM}
        s_cmp_lg_u32 s{sT + 2}, 0
        s_cbranch_scc1 L_fin
        v_lshlrev_b32 v2, 5, v{vC}""")
        for side, st in ((0, sIDX), (1, sNI)):
            a(f"""s_bfe_u32 s{sT + 4}, s{st}, 0x20004
            s_cmp_lg_u32 s{sT + 4}, s{sW}
            s_cbranch_scc1 L_norow{side}{x_}
            s_bfe_u32 s{sT + 4}, s{st}, 0x20009
            v_cmp_eq_u32 vcc, s{sT + 4}, v{vG}
            s_mov_b64 exec, vcc""")
            for rt in range(n):
                if rt: a(f"s_bitcmp0_b32 s{st}, 6\ns_cbranch_scc1 L_rowd{side}{x_}")
                for m in range(2): a(f"ds_write_b128 v2, {vr(ACC2 + 8 * rt + 4 * m, 4)} offset:{L_ROW + 512 * side + 16 * m}")
            a(f"L_rowd{side}{x_}:")
            fullexec()
            a(f"L_norow{side}{x_}:")

    stamp(0)
    a(f"""s_load_dwordx2 s[{X}:{X + 1}], s[0:1], 0
    s_load_dwordx2 s[{WS}:{WS + 1}], s[0:1], 96
    s_load_dwordx2 s[{OUT}:{OUT + 1}], s[0:1], 80
    s_lshr_b32 s{sQ}, s2, 3
    s_cmp_lg_u32 s{sQ}, 24
    s_cbranch_scc1 L_nopf""")
    c("one workgroup per group reads the kernel's own code so that instruction fetch finds it in L2")
    a(f"""s_getpc_b64 s[{sT}:{sT + 1}]
    L_pc:
    v_lshlrev_b32 v2, 6, v0
    v_min_u32 v2, (L_codeend - L_pc - 4), v2
    global_load_dword v{vN}, v2, s[{sT}:{sT + 1}]
    L_nopf:
    v_lshrrev_b32 v2, 6, v0
    v_and_b32 v{vL}, 63, v0
    v_readfirstlane_b32 s{sW}, v2
    s_mov_b32 s{X + 2}, {XBYTES}
    s_mov_b32 s{X + 3}, 0x20000
    s_mov_b32 s{WS + 2}, {WS_SIZE}
    s_mov_b32 s{WS + 3}, 0x20000
    s_mov_b32 s{PF + 2}, {WBYTES}
    s_mov_b32 s{PF + 3}, 0x20000
    s_and_b32 s{sT}, s{sW}, 1
    s_lshl3_add_u32 s{sT}, s{sT}, 56
    s_load_dwordx2 s[{PF}:{PF + 1}], s[0:1], s{sT}
    s_mov_b32 s{sCNT}, 0
    s_mov_b32 s{sONE}, 0x3f803f80
    s_and_b32 s{sTAU}, s2, 7
    v_lshrrev_b32 v{vG}, 4, v{vL}
    v_and_b32 v{vC}, 15, v0
    s_sub_u32 s{sALT}, 16, s{sTAU}
    s_cmp_eq_u32 s{sTAU}, 0
    s_cselect_b32 s{sALT}, 8, s{sALT}
    s_bitcmp1_b32 s2, 3
    s_cselect_b32 s{sP}, s{sALT}, s{sTAU}
    s_and_b32 s{sT + 1}, s2, 0x30
    s_add_u32 s{sP}, s{sP}, s{sT + 1}""")
    if stamps:
        for k in range(1, 16): a(f"s_mov_b32 s{sSTAMP + 2 * k}, 0")
    a(f"""s_cmp_ge_u32 s2, 192
    s_cbranch_scc1 L_ffn
    s_cmp_ge_u32 s2, 64
    s_cbranch_scc1 L_p1""")
    RX = 16; RW = 44; WL = 72; vS, vQ, vR = 76, 77, 78; ST4 = 80; sSW = 3
    c("router: 8 rows per wave, 8 lanes per row")
    a(f"""s_load_dwordx2 s[{WR}:{WR + 1}], s[0:1], 48
    s_mov_b32 s{WR + 2}, 896
    s_mov_b32 s{WR + 3}, 0x20000
    s_sub_u32 s{sT + 1}, 128, s{sP}
    s_cmp_eq_u32 s{sP}, 0
    s_cselect_b32 s{sT + 1}, 64, s{sT + 1}
    s_cmp_ge_u32 s{sW}, 2
    s_cselect_b32 s{sCLS}, s{sT + 1}, s{sP}
    v_bfe_u32 v13, v0, 3, 4
    v_lshl_add_u32 v6, v13, 7, s{sCLS}
    v_and_b32 v14, 7, v0
    v_lshlrev_b32 v14, 4, v14
    v_lshlrev_b32 v15, 4, v{vL}
    s_movk_i32 s{sT + 1}, 896
    v_mad_u32_u24 v7, v6, s{sT + 1}, v14
    s_waitcnt lgkmcnt(0)""")
    stamp(1)
    a(f"""buffer_load_dwordx4 {vr(WL, 4)}, v15, {srd(WR)}, 0 offen
    buffer_load_dword v{vN}, off, {srd(WS)}, 0""")
    c("the barriers interleave the four waves' loads so that all of them receive data from the start")
    for cb in range(7):
        a(f"s_barrier\nbuffer_load_dwordx4 {vr(RX + 4 * cb, 4)}, v7, {srd(X)}, 0 offen offset:{128 * (6 - cb)}")
    a("s_branch L_router")
    vXA0, vXA1, vXB0, vXB1, vGA, vLW, vLR0, vLR1, vGB = 6, 7, 8, 9, 10, 11, 12, 13, 6
    XR = 16; B = 48; CH = 176; U = 208; M1 = 168; GS = 200
    P0, P1 = CH, CH + 16
    BF = lambda c_, dp, k: B + ((c_ * 2 + dp) * 4 + k) * 4
    a("L_p1:")
    c("stage 1: 4 row pairs per wave, 16 lanes per pair")
    a(f"""s_load_dwordx2 s[{WD}:{WD + 1}], s[0:1], 72
    s_lshr_b32 s{sPAR}, s2, 7
    s_cmp_eq_u32 s{sP}, 0
    s_cselect_b32 s{sSTR}, 64, 128
    v_lshrrev_b32 v3, 4, v0
    v_mul_u32_u24 v3, s{sSTR}, v3
    v_add_u32 v3, s{sP}, v3
    v_sub_u32 v14, 2048, v3
    v_lshrrev_b32 v2, 11, v14
    v_lshrrev_b32 v14, v2, v14
    v_lshlrev_b32 v2, 4, v{vC}
    s_movk_i32 s{sT + 1}, 896
    v_cmp_gt_u32 vcc, 12, v{vC}
    s_min_u32 s{sT + 5}, s{sP}, s{sPAR}
    s_cmp_eq_u32 s{sT + 5}, 0
    s_mov_b32 s{sT + 5}, {f2u(1 / 448):#x}
    s_cbranch_scc1 L_nosw
    v_swap_b32 v3, v14
    s_bitset1_b32 s{sT + 5}, 31
    L_nosw:
    v_mad_u32_u24 v{vXA0}, v3, s{sT + 1}, v2
    v_mad_u32_u24 v{vXA1}, v14, s{sT + 1}, v2
    v_cndmask_b32 v{vXB0}, 2.0, v{vXA0}, vcc
    v_cndmask_b32 v{vXB1}, 2.0, v{vXA1}, vcc""")
    c("cos/sin(2 pi e d / 448): seeds, then the three-term recurrence along d")
    vSTEP, vS32, vCO, vCJ = 10, 11, 12, 14
    a(f"""s_mul_i32 s{sT + 1}, s{sW}, 28
    s_add_u32 s{sT + 1}, s{sT + 1}, s{sPAR}
    s_sub_u32 s{sT + 1}, s{sT + 1}, 3
    v_lshl_add_u32 v3, v{vC}, 1, s{sT + 1}
    v_cvt_f32_i32 v{vSTEP}, v3
    v_mul_f32 v{vSTEP}, s{sT + 5}, v{vSTEP}
    v_lshlrev_b32 v3, 3, v{vG}
    v_cvt_f32_u32 v3, v3
    v_mul_f32 v3, v3, v{vSTEP}
    v_mul_f32 v{vS32}, {f2u(32.0):#x}, v{vSTEP}
    v_cos_f32 v{vCJ}, v{vSTEP}
    v_cos_f32 v{vCO}, v{vS32}""")
    for j in range(2):
        a(f"""v_cos_f32 v{P0 + 2 * j}, v3
        v_sin_f32 v{P0 + 2 * j + 1}, v3
        v_add_f32 v2, v3, v{vS32}
        v_cos_f32 v{P1 + 2 * j}, v2
        v_sin_f32 v{P1 + 2 * j + 1}, v2""")
        if j == 0: a(f"v_add_f32 v3, v3, v{vSTEP}")
    a(f"v_add_f32 v{vCJ}, v{vCJ}, v{vCJ}\nv_add_f32 v{vCO}, v{vCO}, v{vCO}")
    for j in range(2, 8):
        for Pb in (P0, P1):
            a(f"v_pk_fma_f32 {vr(Pb + 2 * j, 2)}, {vr(vCJ, 2)}, {vr(Pb + 2 * j - 2, 2)}, {vr(Pb + 2 * j - 4, 2)} {CHEB}")
    g0 = []
    def pk(kk, Pb):
        for c_ in range(2):
            for dp in range(2):
                for mm in range(2):
                    g0.append(f"v_cvt_pk_bf16_f32 v{BF(c_, dp, kk & 3) + 2 * (kk >> 2) + mm}, v{Pb + 2 * (4 * mm + dp) + c_}, v{Pb + 2 * (4 * mm + dp + 2) + c_}")
    pk(0, P0); pk(1, P1)
    for kk in range(2, 7):
        cur, prev = (P1, P0) if kk % 2 == 0 else (P0, P1)
        for m in range(8): g0.append(f"v_pk_fma_f32 {vr(prev + 2 * m, 2)}, {vr(vCO, 2)}, {vr(cur + 2 * m, 2)}, {vr(prev + 2 * m, 2)} {CHEB}")
        pk(kk, prev)
    a("s_waitcnt lgkmcnt(0)")
    stamp(1)
    for n in range(8):
        rr, hf, pc = n >> 2, (n >> 1) & 1, n & 1
        a(f"buffer_load_dwordx4 {vr(XR + 4 * n, 4)}, v{vXA0 + rr + 2 * pc}, {srd(X)}, 0 offen offset:{448 * hf + 256 * pc}")
        if n >= 1: emit(g0, ilv)
    a(f"s_load_dword s{sNON}, s[{WS}:{WS + 1}], 0")
    emit(g0, 999)
    MT = CH
    c("16-point row stage (twiddles included), scaled by -ln2")
    a(f"""s_mov_b32 s{WD + 2}, s{PF + 2}
    s_mov_b32 s{WD + 3}, 0x20000
    s_lshl4_add_u32 s{sWP}, s{sTAU}, s{sQ}
    s_lshl2_add_u32 s{sWP}, s{sWP}, s{sW}
    s_sub_u32 s{sWP}, s{sWP}, 32
    s_mul_i32 s{sWP}, s{sWP}, 3136
    v_lshlrev_b32 v7, 7, v{vL}
    v_lshlrev_b32 v2, 2, v{vG}
    v_mul_u32_u24 v2, s{sSTR}, v2
    v_add_u32 v2, s{sP}, v2
    v_mul_u32_u24 v2, v2, v{vC}
    v_mul_u32_u24 v3, s{sSTR}, v{vC}
    v_cvt_f32_u32 v2, v2
    v_cvt_f32_u32 v3, v3
    v_mul_f32 v2, {f2u(1 / 2048):#x}, v2
    v_mul_f32 v3, {f2u(1 / 2048):#x}, v3""")
    for r in range(4):
        a(f"v_cos_f32 v{MT + r}, v2\nv_sin_f32 v{MT + 4 + r}, v2")
        if r < 3: a("v_add_f32 v2, v2, v3")
    c("pull this group's share of w_gate / w_up into L2 for the FFN workgroups")
    nr = pfrows // 16; sk = 224 - pfrows
    a(f"""s_lshr_b32 s{sT}, s{sW}, 1
    s_lshl1_add_u32 s{sT}, s{sQ}, s{sT}
    s_mul_i32 s{sT}, s{sT}, {nr * 3584}
    s_mul_i32 s{sT + 4}, s{sPAR}, {sk * 3584}
    s_mul_i32 s{sT + 1}, s{sTAU}, 448
    s_and_b32 s{sT + 1}, s{sT + 1}, 0xffffff80
    s_add_u32 s{sT}, s{sT}, s{sT + 4}
    s_add_u32 s{sT}, s{sT}, s{sT + 1}
    s_sub_u32 s{sT}, s{sT}, {(16 * nr - sk) * 3584}
    v_lshrrev_b32 v252, 2, v{vL}
    v_mul_u32_u24 v252, 3584, v252
    v_and_b32 v253, 3, v0
    v_lshl_add_u32 v252, v253, 7, v252
    s_mov_b32 exec_hi, {((1 << (4 * nr)) - 1) >> 32:#x}
    buffer_load_dword v255, v252, {srd(PF)}, s{sT} offen
    s_mov_b32 exec_hi, -1
    s_mov_b32 s{sT + 2}, {f2u(-LN2):#x}""")
    for m in range(4): a(f"v_pk_mul_f32 {vr(MT + 2 * m, 2)}, {vr(MT + 2 * m, 2)}, s[{sT + 2}:{sT + 3}] op_sel_hi:[1,0]")
    a(f"""v_cvt_pk_bf16_f32 v{M1}, v{MT}, v{MT + 1}
    v_cvt_pk_bf16_f32 v{M1 + 1}, v{MT + 2}, v{MT + 3}
    v_cvt_pk_bf16_f32 v{M1 + 2}, -v{MT + 4}, -v{MT + 5}
    v_cvt_pk_bf16_f32 v{M1 + 3}, -v{MT + 6}, -v{MT + 7}
    v_cvt_pk_bf16_f32 v{M1 + 4}, v{MT + 4}, v{MT + 5}
    v_cvt_pk_bf16_f32 v{M1 + 5}, v{MT + 6}, v{MT + 7}
    v_mov_b32 v{M1 + 6}, v{M1}
    v_mov_b32 v{M1 + 7}, v{M1 + 1}
    s_mov_b32 s{sMSK}, 0xffff0000
    v_mov_b32 v8, 1.0
    s_cmp_lg_u32 s{sP}, 0
    s_cbranch_scc1 L_m1d""")
    c("pair 0 holds the self-mirrored classes 0 and 64; rows 0 and 1024 share one slot")
    for m in range(4):
        a(f"v_and_b32 v{M1 + 4 + m}, s{sMSK}, v{M1 + m}\nv_xor_b32 v{M1 + m}, v{M1 + 4 + m}, v{M1 + m}")
    a(f"""v_cmp_lt_u32 vcc, 15, v0
    v_lshlrev_b32 v2, 15, v0
    v_and_b32 v2, 0x8000, v2
    v_cndmask_b32 v8, 0, v8, vcc""")
    setexec(0xffff, 0)
    a(f"v_xor_b32 v{M1 + 2}, {bf(LN2):#x}, v2")
    a("L_m1d:")
    c("same for w_down")
    setexec(0x1ffffff, 0)
    a(f"buffer_load_dword v255, v7, {srd(WD)}, s{sWP} offen")
    fullexec()
    sE2 = sT + 6
    SS, QQ, RS, CC = CH, CH + 2, CH + 4, CH + 6
    a(f"""v_lshlrev_b32 v2, 18, v{vG}
    s_lshl_b32 s{sT}, s{sW}, 7
    v_lshl_add_u32 v3, v{vC}, 2, s{sT}
    v_add_u32 v{vGA}, v3, v2
    v_add_u32 v3, s{sPAR}, v{vC}
    v_cmp_gt_u32 vcc, 2, v3
    v_sub_u32 v3, 17, v3
    s_sub_u32 s{sT}, 896, s{sT}
    v_cndmask_b32 v3, v3, v{vC}, vcc
    v_lshl_add_u32 v3, v3, 2, s{sT}
    v_add_u32 v{vGB}, v3, v2
    s_lshl4_add_u32 s{sGA}, s{sP}, s{sPAR}
    s_lshl_b32 s{sGA}, s{sGA}, 6
    s_add_u32 s{sGA}, s{sGA}, {O_G}
    s_mov_b32 s{sE2}, 0xfffefffe
    s_mov_b32 s{sE2 + 1}, s{sE2}""")
    for r in range(1, 4): a(f"s_add_u32 s{sGR + r - 1}, s{sGA}, {r * GT1}")
    a(f"""v_mov_b32 v3, 0
    ds_write_b32 v3, v3 offset:{L_KEY2}
    v_lshrrev_b32 v2, 4, v0
    v_and_b32 v14, 7, v0
    v_xor_b32 v2, v2, v14
    v_lshlrev_b32 v2, 4, v2
    v_lshl_add_u32 v{vLW}, v{vC}, 8, v2
    v_xor_b32 v2, v{vC}, v{vG}
    v_lshlrev_b32 v2, 4, v2
    v_lshl_add_u32 v{vLR0}, v{vG}, 8, v2
    v_xor_b32 v{vLR1}, 64, v{vLR0}
    v_mov_b32 v{SS}, 0
    v_mov_b32 v{SS + 1}, 0
    v_mov_b32 v{QQ}, {f2u(448e-5 / 16):#x}
    v_mov_b32 v{QQ + 1}, v{QQ}
    s_cmp_eq_u32 s{sPAR}, 0
    s_movk_i32 s{sSGL}, 0x3f80
    s_cselect_b32 s{sSGL}, 0xbf80, s{sSGL}
    s_cselect_b32 s{sC2}, 0, 2.0
    s_lshl_b32 s{sSGH}, s{sSGL}, 16""")
    stamp(2)
    c("layer-norm statistics, x[d] +- x[d+224], normalisation")
    for n in range(8):
        rr, hf, pc = n >> 2, (n >> 1) & 1, n & 1
        a(f"s_waitcnt vmcnt({7 - n + 2})")
        fin = []
        for m in range(4):
            x = XR + 4 * n + m; u = U + 16 * rr + 8 * pc + 2 * m
            a(f"v_dot2c_f32_bf16 v{SS + rr}, s{sONE}, v{x}\nv_dot2c_f32_bf16 v{QQ + rr}, v{x}, v{x}")
            if hf == 0: fin += [f"v_lshlrev_b32 v{u}, 16, v{x}", f"v_and_b32 v{u + 1}, s{sMSK}, v{x}"]
            else: fin += [f"v_dot2c_f32_bf16 v{u}, s{sSGL}, v{x}", f"v_dot2c_f32_bf16 v{u + 1}, s{sSGH}, v{x}"]
        if n % 4 == 3:
            red = []
            for m in range(4): red += [f"v_add_f32_dpp v{v}, v{v}, v{v} row_ror:{1 << m} {FULL}" for v in (SS + rr, QQ + rr)]
            emit(fin, 2)
            while red:
                emit(red, 2); emit(fin, 1)
            if rr == 1: stamp(3)
            a(f"""v_mul_f32 v2, {f2u(-1 / 448):#x}, v{SS + rr}
            v_mul_f32 v{QQ + rr}, {f2u(1 / 448):#x}, v{QQ + rr}
            v_fma_f32 v{QQ + rr}, -v2, v2, v{QQ + rr}
            v_rsq_f32 v{RS + rr}, v{QQ + rr}
            v_cvt_pk_bf16_f32 v2, 0, v2
            v_mul_f32 v{SS + rr}, s{sC2}, v2""")
            emit(fin, 99)
            a(f"v_mul_f32 v{CC + rr}, v{SS + rr}, v{RS + rr}")
            for m in range(8):
                u = U + 16 * rr + 2 * m
                a(f"v_pk_fma_f32 {vr(u, 2)}, {vr(u, 2)}, {vr(RS, 2)}, {vr(CC, 2)} op_sel:[0,{rr},{rr}] op_sel_hi:[1,{rr},{rr}]")
        emit(fin, 99)
    c("row + mirror row (cos part), row - mirror row (sin part); even and odd d go to separate fragments")
    EE = XR; PK = CH + 16
    for mt in range(2):
        for m in range(8):
            if mt == 0: a(f"v_pk_fma_f32 {vr(EE + 2 * m, 2)}, v[8:9], {vr(U + 16 + 2 * m, 2)}, {vr(U + 2 * m, 2)} op_sel_hi:[0,1,1]")
            else: a(f"v_pk_fma_f32 {vr(EE + 16 + 2 * m, 2)}, v[8:9], {vr(U + 2 * m, 2)}, {vr(U + 16 + 2 * m, 2)} {CHEB}")
        for dp in range(2):
            for m in range(4): a(f"v_cvt_pk_bf16_f32 v{PK + 8 * mt + 4 * dp + m}, v{EE + 16 * mt + 4 * m + dp}, v{EE + 16 * mt + 4 * m + 2 + dp}")
            a(f"ds_write_b128 v{vLW}, {vr(PK + 8 * mt + 4 * dp, 4)} offset:{L_EO + 4096 * (2 * mt + dp)}")
    a("s_waitcnt lgkmcnt(0)\ns_barrier")
    stamp(4)
    if stamps: a("s_waitcnt lgkmcnt(0)")
    c("hidden DFT")
    slots = [XR + 4 * i for i in range(8)] + [U + 4 * i for i in range(8)]
    ACC = CH
    def rd(n):
        k, md = n >> 2, n & 3
        if k < 3: a(f"ds_read_b128 {vr(slots[n], 4)}, v{vLR1 if k & 1 else vLR0} offset:{L_EO + md * 4096 + k * 1024}")
        else: a(f"ds_read_b64 {vr(slots[n], 2)}, v{vLR1} offset:{L_EO + md * 4096 + k * 1024}")
    def mm_(d, n, c_, first):
        k, dp = n >> 2, n & 1
        if k < 3: a(f"v_mfma_f32_16x16x32_bf16 {vr(d, 4)}, {vr(slots[n], 4)}, {vr(BF(c_, dp, k), 4)}, {'0' if first else vr(d, 4)}")
        else: a(f"v_mfma_f32_16x16x16_bf16 {vr(d, 4)}, {vr(slots[n], 2)}, {vr(BF(c_, dp, k), 2)}, {vr(d, 4)}")
    for n in range(pre): rd(n)
    a(f"s_add_u32 s{sNON}, s{sNON}, 1")
    for m in range(8): a(f"v_mov_b32 v{GS + m}, s{sNON}")
    for n in range(16):
        a(f"s_waitcnt lgkmcnt({min(16, n + pre) - n - 1})")
        mm_(ACC + 4 * (n & 3), n, (n >> 1) & 1, n < 4)
        if n + pre < 16: rd(n + pre)
    a(f"""s_mov_b32 s{sT1}, s{sALT}
    s_lshl_b32 s{sTH}, s{sPAR}, 2
    s_and_b32 s{sM}, s{sQ}, 7
    s_cmp_lg_u32 s{sP}, 0
    s_cbranch_scc1 L_nofix""")
    for k in range(4):
        for dp in range(2): mm_(CH + 16 + 4 * dp, 4 * k + 2 + dp, 0, k == 0)
    setexec(0xffff, 0)
    a(f"v_mov_b32 v{ACC + 12}, v{CH + 16}\nv_mov_b32 v{ACC + 8}, v{CH + 20}")
    fullexec()
    a("L_nofix:")
    stamp(12)
    c("e and 224-e, 16-point row stage, publish G (lane 0 of each 16 keeps the tag)")
    T12 = B; FRG = B + 16; D2 = B + 24
    seq = []
    for t in range(2):
        l = []
        for c_ in range(2):
            for h in range(2):
                ng = "" if t == 0 else (" neg_lo:[1,0] neg_hi:[1,0]" if c_ else " neg_lo:[0,1] neg_hi:[0,1]")
                l.append(f"v_pk_add_f32 {vr(T12 + 8 * t + 4 * c_ + 2 * h, 2)}, {vr(ACC + 8 * c_ + 2 * h, 2)}, {vr(ACC + 8 * c_ + 4 + 2 * h, 2)}{ng}")
        for m in range(4): l.append(f"v_cvt_pk_bf16_f32 v{FRG + 4 * t + m}, v{T12 + 8 * t + 2 * m}, v{T12 + 8 * t + 2 * m + 1}")
        seq.append(l)
    m2 = lambda t, c_: f"v_mfma_f32_16x16x32_bf16 {vr(D2 + 8 * t + 4 * c_, 4)}, {vr(M1 + 4 * c_, 4)}, {vr(FRG + 4 * t, 4)}, 0"
    emit(seq[0], 2); emit(seq[1], 2); emit(seq[0], 99); emit(seq[1], 2)
    a(m2(0, 0)); emit(seq[1], 2); a(m2(0, 1)); emit(seq[1], 2)
    a(m2(1, 0)); a(m2(1, 1))
    for t in range(2):
        a(f"s_mov_b64 exec, s[{sE2}:{sE2 + 1}]")
        for r in range(4): a(f"v_cvt_pk_bf16_f32 v{GS + 4 * t + r}, v{D2 + 8 * t + r}, v{D2 + 8 * t + 4 + r}")
        fullexec()
        for r in range(4): a(f"buffer_store_dword v{GS + 4 * t + r}, v{vGB if t else vGA}, {srd(WS)}, s{sGR + r - 1 if r else sGA} offen sc1")
    stamp(5)
    c("stage 2, half tile: addresses, 128-point matrix, x tile, statistics")
    emit(preA(V1), 99)
    mix(preB(V1) + genH(V1), [ldst(V1)] + xloads(V1), mgap)
    psetup()
    a("s_waitcnt vmcnt(0)")
    phase2(V1, glate, unpack(V1))
    SEL = AF + 16; D = AF + 20
    a(f"""L_owner:
    s_cmp_eq_u32 s{sFIN}, 0
    s_cbranch_scc1 L_own
    s_waitcnt lgkmcnt(0)
    s_barrier
    s_waitcnt vmcnt(0)
    s_barrier
    s_branch L_fin
    L_own:
    s_and_b32 s{sT + 2}, s{sW}, 1
    s_cmp_ge_u32 s{sW}, 2
    s_cselect_b32 s{sT + 1}, -1, 0
    s_cselect_b32 s{sT + 7}, 512, 0
    s_cselect_b32 s{sNI}, s{sNI}, s{sIDX}
    v_lshl_add_u32 v2, s{sT + 2}, 2, v13
    v_xor_b32 v2, s{sT + 1}, v2
    s_and_b32 s{sT + 1}, s{sT + 1}, 29
    v_add3_u32 v2, v2, s{sT + 1}, 3
    s_bfe_u32 s{sT}, s{sNI}, 0x20007
    s_lshl2_add_u32 s{sT + 7}, s{sT}, s{sT + 7}
    v_lshl_add_u32 v9, v2, 4, s{sT + 7}
    v_lshrrev_b32 v2, 2, v{vC}
    v_and_b32 v3, 1, v2
    v_lshlrev_b32 v3, 4, v3
    v_mov_b32 v15, 0x3f80
    v_cmp_gt_u32 vcc, 2, v2
    v_lshlrev_b32 v15, v3, v15
    s_and_b32 s{sT}, s{sKEY}, 0xfffff800
    v_cndmask_b32 v{SEL}, 0, v15, vcc
    v_cndmask_b32 v{SEL + 1}, v15, 0, vcc
    s_or_b32 s{sT}, s{sT}, 0x400
    s_ashr_i32 s{sT + 1}, s{sT}, 31
    s_orn2_b32 s{sT + 1}, 0x80000000, s{sT + 1}
    s_xor_b32 s{sT}, s{sT}, s{sT + 1}
    v_mov_b32 v15, s{sT}
    v_mul_f32 v15, s{sLG}, v15
    v_exp_f32 v15, v15
    s_lshr_b32 s{sT + 3}, 0x000f000f, s{sT + 2}
    v_add_f32 v15, 1.0, v15
    v_rcp_f32 v15, v15
    s_and_b32 s{sT + 3}, s{sT + 3}, 0x000f000f
    v_mul_f32 v15, s{sLG}, v15
    s_waitcnt lgkmcnt(0)
    s_barrier
    ds_read_b32 v{TV}, v9 offset:{L_ROW}
    v_mov_b32 v10, s{sNON}
    {["s_branch L_ppc", "s_cmp_lt_u32 s2, 64" + chr(10) + "s_cbranch_scc1 L_ppc", "s_cmp_ge_u32 s2, 64" + chr(10) + "s_cbranch_scc1 L_ppc", ""][plate]}
    L_pp:
    {sleep(ppsleep)}""")
    ploads()
    spin_check("L_ppd")
    a("L_ppc:")
    c("sum the 56 partial results with a selector matrix")
    for n in range(4):
        a(f"s_waitcnt vmcnt({3 - n})")
        if n == 0: stamp(1)
        a(f"v_mfma_f32_16x16x16_bf16 {vr(D, 4)}, {vr(SEL, 2)}, {vr(PR + 4 * n, 2)}, {'0' if n == 0 else vr(D, 4)}")
        if n == 0: a(f"v_lshlrev_b32 v8, 16, v{TV + 1}")
        if n == 1: a(f"v_fma_f32 v14, v8, v{TV + 2}, v{TV + 3}")
        if n == 2: a(f"v_bitop3_b32 v2, v{PR + 2}, v{PR + 6}, s{sNON} bitop3:0x7e")
    a(f"""v_bitop3_b32 v3, v{PR + 10}, v{PR + 14}, s{sNON} bitop3:0x7e
    v_or_b32 v2, v2, v3
    v_cmp_ne_u32 vcc, 0, v2
    s_cbranch_vccnz L_pp
    L_ppd:""")
    def epoch():
        if 'j' in kill: return
        c("this workgroup has seen tagged data from every other one: advance the epoch word")
        a(f"s_cmp_lg_u32 s{sGAM}, 0\ns_cbranch_scc1 L_noep")
        setexec(1, 0)
        a(f"buffer_store_dword v10, off, {srd(WS)}, 0 {esc}")
        fullexec()
        a("L_noep:")
    if eearly: epoch()
    c("every wave's tile stores are complete past this barrier, so the row below is not overwritten")
    a("s_barrier")
    stamp(10)
    a("s_waitcnt lgkmcnt(0)")
    for m in ["row_ror:4", "row_ror:8"]: a(f"v_add_f32_dpp v{D}, v{D}, v{D} {m} {FULL}")
    a(f"""v_fmac_f32 v14, v{D}, v15
    v_exp_f32 v3, v14
    v_mul_f32 v2, v14, v{TV}
    v_add_f32 v3, 1.0, v3
    v_rcp_f32 v3, v3
    s_mov_b32 exec_lo, s{sT + 3}
    s_mov_b32 exec_hi, s{sT + 3}
    v_fma_f32 v2, v2, v3, v8
    v_cvt_pk_bf16_f32 v2, v2, v2
    buffer_store_short v2, v12, {srd(OUT)}, s{sOA} offen""")
    stamp(11)
    if stamps: a(f"s_mov_b32 s{sSTAMP + 2 * 12}, s{sCNT}")
    if not eearly: epoch()
    a("L_fin:")
    if stamps:
        fullexec()
        a("s_waitcnt lgkmcnt(0)")
        for k in range(16): a(f"v_mov_b32 v{16 + k}, s{sSTAMP + 2 * k}")
        a(f"""s_lshl2_add_u32 s{sT}, s2, s{sW}
        s_lshl_b32 s{sT}, s{sT}, 6
        s_add_u32 s{sT}, s{sT}, {O_STAMP}
        s_mov_b32 s{WS + 2}, 0x200000""")
        setexec(1, 0)
        for k in range(4): a(f"buffer_store_dwordx4 v[{16 + 4 * k}:{19 + 4 * k}], off, {srd(WS)}, s{sT} offset:{16 * k}")
    a("L_end:\ns_endpgm")

    sRS, sRK = 99, 100
    a(f"""L_router:
    s_mov_b32 s{sT1}, s{sTAU}
    s_mov_b32 s{sTH}, 0
    s_mov_b32 s{sM}, s{sQ}""")
    emit(preA(V2) + preB(V2), 99)
    a(f"""v_mov_b32 v2, 0
    v_mov_b32 v3, 0
    ds_write_b64 v3, v[2:3] offset:{L_KEY}
    s_lshl_b32 s{sT}, s{sW}, 10
    v_add_u32 v15, s{sT}, v15
    v_add_u32 v14, s{sT}, v14
    v_mov_b32 v12, 0
    v_mov_b32 v{vS}, 0
    v_mov_b32 v{vQ}, {f2u(448e-5 / 8):#x}
    v_mov_b32 v{vR}, 0
    v_lshlrev_b32 v13, 4, v13
    s_lshl_b32 s{sRS}, s{sCLS}, 8
    s_add_u32 s{sRS}, s{sRS}, {O_ST}
    v_lshlrev_b32 v11, {3 + ks}, v{vL}
    s_lshl_b32 s{sRK}, s{sP}, {ks}
    s_add_u32 s{sRK}, s{sRK}, {O_KEY}
    v_xor_b32 v6, 0x7ff, v6
    s_waitcnt lgkmcnt(0)
    s_barrier""")
    c("bring the key lines on chip ahead of the real store (an unused word of the slot; wave 0, dropped by the range check otherwise)")
    a(f"""s_cmp_eq_u32 s{sW}, 0
    s_cselect_b32 s{sT}, 0, 2.0
    v_or_b32 v2, s{sT}, v11""")
    setexec(0x01010101, 0x01010101)
    a(f"buffer_store_dword v3, v2, {srd(WS)}, s{sRK} offen offset:{ktoff} sc1")
    fullexec()
    a(f"""s_waitcnt vmcnt(9)
    ds_write_b128 v15, {vr(WL, 4)} offset:{L_WR}""")
    for cb in range(7): a(f"ds_read_b128 {vr(RW + 4 * cb, 4)}, v14 offset:{L_WR + 128 * (6 - cb)}")
    for m in range(4): a(f"v_dot2c_f32_bf16 v12, s{sONE}, v{WL + m}")
    stamp(2)
    wred = [f"v_add_f32_dpp v12, v12, v12 {m} bank_mask:0xf" for m in RED] + [f"v_readlane_b32 s{sSW}, v12, 63"]
    for cb in range(7):
        a(f"s_waitcnt vmcnt({7 - cb})")
        if cb == 0:
            a(f"v_readfirstlane_b32 s{sNON}, v{vN}\ns_add_u32 s{sNON}, s{sNON}, 1")
        if cb == 1: a("s_waitcnt lgkmcnt(0)")
        for m in range(4):
            x = RX + 4 * cb + m
            a(f"v_dot2c_f32_bf16 v{vS}, s{sONE}, v{x}\nv_dot2c_f32_bf16 v{vQ}, v{x}, v{x}")
            if cb == 1: a(f"v_dot2c_f32_bf16 v{vR}, v{RW + m}, v{RX + m}")
            if cb >= 1: a(f"v_dot2c_f32_bf16 v{vR}, v{RW + 4 * cb + m}, v{x}")
            if cb < 2: emit(wred, 1)
    stamp(3)
    a(f"v_mov_b32 v{ST4 + 3}, s{sNON}")
    for m in ["quad_perm:[1,0,3,2]", "quad_perm:[2,3,0,1]", "row_half_mirror"]:
        for v in (vS, vQ, vR): a(f"v_add_f32_dpp v{v}, v{v}, v{v} {m} {FULL}")
    c("key = order-preserving score bits, low 11 bits = 2047 - row")
    a(f"""v_mul_f32 v{ST4 + 2}, {f2u(-1 / 448):#x}, v{vS}
    v_mul_f32 v2, {f2u(1 / 448):#x}, v{vQ}
    v_fma_f32 v2, -v{ST4 + 2}, v{ST4 + 2}, v2
    v_rsq_f32 v{ST4}, v2
    v_cvt_pk_bf16_f32 v{ST4 + 2}, 0, v{ST4 + 2}
    v_fmac_f32 v{vR}, s{sSW}, v{ST4 + 2}
    v_mul_f32 v{vR}, v{vR}, v{ST4}
    s_movk_i32 s{sT}, 0x7ff
    v_ashrrev_i32 v2, 31, v{vR}
    v_or_b32 v2, 0x80000000, v2
    v_xor_b32 v2, v2, v{vR}""")
    setexec(0x01010101, 0x01010101)
    a(f"""v_bfi_b32 v2, s{sT}, v6, v2
    ds_max_u32 v3, v2 offset:{L_KEY}
    v_mul_f32 v{ST4}, s{sLG}, v{ST4}
    v_mul_f32 v{ST4 + 1}, v{ST4 + 2}, v{ST4}
    v_mov_b32 v{vR + 1}, s{sNON}
    s_cmp_lg_u32 s{sW}, 0
    s_waitcnt lgkmcnt(0)
    s_barrier
    s_cbranch_scc1 L_nokey
    ds_read_b32 v{vR}, v3 offset:{L_KEY}
    s_waitcnt {'' if ktoff else 'vmcnt(0) '}lgkmcnt(0)
    buffer_store_dwordx2 {vr(vR, 2)}, v11, {srd(WS)}, s{sRK} offen sc1""")
    stamp(4)
    a(f"""L_nokey:
    buffer_store_dwordx4 {vr(ST4, 4)}, v13, {srd(WS)}, s{sRS} offen sc1""")
    fullexec()
    c("stage 2, full tile")
    mix(genH(V2), xloads(V2) + [ldst(V2)], mgap2)
    psetup()
    a("s_waitcnt vmcnt(1)")
    emit(unpack(V2), 99)
    a("s_waitcnt vmcnt(0)")
    phase2(V2, glate2, [])
    a("s_branch L_owner")

    sFT, sSEL, sPO, sXO, sDO, sLR = 31, 24, 36, 37, 26, 30
    WF = 16; DR = 72; DF = 104; CS = 140; XFr = 148; STg = 176; AC = 180; HF = 188; Y = 72; KYf = 192; ONES = 196
    a(f"""L_ffn:
    s_cmp_ge_u32 s2, {NWG}
    s_cbranch_scc1 L_end""")
    c("FFN: wave = (gate | up, half of d); weights go through LDS and are read back transposed")
    a(f"""s_load_dwordx2 s[{WD}:{WD + 1}], s[0:1], 72
    s_mul_i32 s{sFT}, s{sTAU}, 7
    s_add_u32 s{sFT}, s{sFT}, s{sQ}
    s_sub_u32 s{sFT}, s{sFT}, 24
    s_lshr_b32 s{sT + 2}, s{sW}, 1
    s_mov_b32 s{WD + 2}, s{PF + 2}
    s_mov_b32 s{WD + 3}, 0x20000
    v_mul_u32_u24 v7, {8 * 896}, v{vG}
    v_min_u32 v2, 13, v{vC}
    v_lshl_add_u32 v7, v2, 4, v7
    s_mul_i32 s{sDO}, s{sFT}, {32 * 896}
    s_mul_i32 s{sT + 1}, s{sW}, 224
    s_add_u32 s{sDO}, s{sDO}, s{sT + 1}
    s_add_u32 s{sDO + 1}, s{sDO}, 3584
    v_lshrrev_b32 v2, 2, v{vL}
    v_mul_u32_u24 v2, 3584, v2
    v_and_b32 v3, 3, v0
    v_lshl_add_u32 v6, v3, 4, v2
    s_mul_i32 s{sT + 3}, s{sT + 2}, {224 * 3584}
    s_lshl_b32 s{sT + 4}, s{sFT}, 6
    s_add_u32 s{sT + 3}, s{sT + 3}, s{sT + 4}
    s_mul_i32 s{sT + 6}, s{sW}, 14336
    s_mov_b32 m0, s{sT + 6}
    s_waitcnt lgkmcnt(0)""")
    stamp(1)
    a(f"s_load_dword s{sNON}, s[{WS}:{WS + 1}], 0")
    def dma(n):
        a(f"buffer_load_dwordx4 v6, {srd(PF)}, s{sT + 3} offen lds")
        if n < 13: a(f"s_add_u32 m0, m0, 1024\ns_add_u32 s{sT + 3}, s{sT + 3}, {16 * 3584}")
    for n in range(n0): dma(n)
    a(f"""v_mul_u32_u24 v8, 224, v{vG}
    v_lshl_add_u32 v8, v{vC}, 4, v8
    s_mul_i32 s{sPO}, s{sFT}, 1792
    s_mul_i32 s{sT}, s{sW}, 448
    s_add_u32 s{sPO}, s{sPO}, s{sT}
    s_add_u32 s{sPO}, s{sPO}, {O_P}
    v_lshrrev_b32 v2, 2, v{vC}
    v_lshlrev_b32 v2, 6, v2
    v_lshl_add_u32 v2, v3, 3, v2
    v_lshl_add_u32 v9, v{vG}, 9, v2
    v_add_u32 v9, s{sT + 6}, v9
    v_lshlrev_b32 v10, {ks}, v{vL}
    s_lshl_b32 s{sKO}, s{sTAU}, {6 + ks}
    s_add_u32 s{sKO}, s{sKO}, {O_KEY}
    v_lshlrev_b32 v11, 4, v{vG}
    s_lshl_b32 s{sT}, s{sW}, 7
    v_add_u32 v12, s{sT}, v11
    s_lshl_b32 s{sLR}, s{sW}, 10
    s_add_u32 s{sLR}, s{sLR}, {L_FROW}
    v_add_u32 v11, s{sLR}, v11
    v_and_b32 v13, 7, v0
    v_lshlrev_b32 v13, 2, v13
    v_lshl_add_u32 v13, v{vG}, 5, v13
    v_add_u32 v13, {L_FEX}, v13
    v_lshlrev_b32 v200, 4, v{vL}
    s_mul_i32 s{sXO}, s{sT + 2}, 448
    s_mov_b32 s{sSEL}, 0x05040100
    s_mov_b32 s{sSEL + 1}, 0x07060302""")
    for m in range(4): a(f"v_mov_b32 v{ONES + m}, s{sONE}")
    a("s_waitcnt lgkmcnt(0)")
    if pt:
        for m in range(4): a(f"v_mov_b32 v{AC + m}, s{sNON}")
        setexec(0x3fff3fff, 0)
        a(f"buffer_store_dwordx4 {vr(AC, 4)}, v8, {srd(WS)}, s{sPO} offen sc1")
        fullexec()
    a(f"s_add_u32 s{sNON}, s{sNON}, 1\ns_barrier")
    def ldkey(): a(f"buffer_load_dwordx2 {vr(KYf, 2)}, v10, {srd(WS)}, s{sKO} offen sc1")
    def csum(n):
        for t in range(2): a(f"v_mfma_f32_16x16x32_bf16 {vr(CS + 4 * t, 4)}, {vr(WF + 8 * n + 4 * t, 4)}, {vr(ONES, 4)}, {'0' if n == 0 else vr(CS + 4 * t, 4)}")
    def consume(k, younger):
        if younger is not None: a(f"s_waitcnt vmcnt({younger})")
        for t in range(2):
            for hh in range(2):
                a(f"ds_read_b64_tr_b16 {vr(WF + 8 * k + 4 * t + 2 * hh, 2)}, v9 offset:{2048 * k + 256 * hh + 32 * t}")
        if k > 0:
            a("s_waitcnt lgkmcnt(4)"); csum(k - 1)
    def pick():
        a(f"""v_cmp_ne_u32 vcc, s{sNON}, v{KYf + 1}
        v_cndmask_b32 v2, v{KYf}, 0, vcc""")
        for m in RED: a(f"v_max_u32_dpp v2, v2, v2 {m} bank_mask:0xf")
        a(f"""v_readlane_b32 s{sKEY}, v2, 63
        s_andn2_b32 s{sT + 3}, 0x7ff, s{sKEY}""")
    def fetch():
        a(f"""s_mov_b32 s{sIDX}, s{sT + 3}
        s_mul_i32 s{sT}, s{sIDX}, 896
        s_add_u32 s{sT}, s{sT}, s{sXO}""")
        setexec(0xfffffff, 0)
        a(f"buffer_load_dwordx4 v200, {srd(X)}, s{sT} offen lds")
        fullexec()
        a(f"""s_and_b32 s{sT + 1}, s{sIDX}, 127
        s_lshl_b32 s{sT + 1}, s{sT + 1}, 8
        s_lshr_b32 s{sT + 3}, s{sIDX}, 7
        s_lshl4_add_u32 s{sT + 1}, s{sT + 3}, s{sT + 1}
        s_add_u32 s{sT + 1}, s{sT + 1}, {O_ST}
        buffer_load_dwordx4 {vr(STg, 4)}, off, {srd(WS)}, s{sT + 1} sc1""")
    assert keyp % 2 == 0 and dep >= 2
    c("stream the weights; column sums (for the mean correction) on the way")
    for n in range(n0, 4): dma(n)
    done = 0
    for n in range(2, 7):
        if 2 * n == keyp: ldkey()
        dma(2 * n); dma(2 * n + 1)
        k = n - dep
        if k >= 0:
            consume(k, 2 * dep + (1 if 2 * k + 1 < keyp <= 2 * n else 0) + (int(pt) if 2 * k + 1 < n0 else 0)); done = k + 1
    if keyp == 14: ldkey()
    stamp(11)
    if stamps: a("s_waitcnt lgkmcnt(0)")
    a(f"s_mov_b32 m0, s{sLR}")
    while done < keyp // 2:
        consume(done, 13 - 2 * done); done += 1
    c("best key among those already valid: fetch that row while the missing keys are polled")
    a(f"s_waitcnt vmcnt({14 - keyp})")
    pick(); fetch()
    a(f"s_cbranch_vccz L_nrk\ns_mov_b64 exec, vcc")
    ldkey()
    fullexec()
    a("s_waitcnt vmcnt(3)\ns_branch L_w3\nL_nrk:\ns_waitcnt vmcnt(2)\nL_w3:")
    stamp(7)
    if stamps: a("s_waitcnt lgkmcnt(0)")
    while done < 7:
        consume(done, None); done += 1
    a("s_waitcnt lgkmcnt(0)"); csum(6)
    stamp(2)
    a(f"""s_cbranch_vccz L_fkd
    s_branch L_fkc
    L_fk:
    s_mov_b64 exec, vcc""")
    ldkey()
    fullexec()
    spin_check("L_fkd")
    a("L_fkc:\ns_waitcnt vmcnt(0)")
    pick()
    a(f"s_cmp_eq_u32 s{sT + 3}, s{sIDX}\ns_cbranch_scc1 L_fsame")
    fetch()
    a("L_fsame:\ns_cbranch_vccnz L_fk\nL_fkd:")
    stamp(4)
    for r in range(8):
        a(f"buffer_load_dwordx4 {vr(DR + 4 * r, 4)}, v7, {srd(WD)}, s{sDO + (r >> 2)} offen offset:{896 * (r & 3)}")
    a("s_waitcnt vmcnt(9)")
    stamp(3)
    if stamps: a("s_waitcnt lgkmcnt(0)")
    for n in range(7): a(f"ds_read_b128 {vr(XFr + 4 * n, 4)}, v11 offset:{64 * n}")
    a(f"""s_waitcnt vmcnt(8)
    s_branch L_fsc
    L_fs:
    buffer_load_dwordx4 {vr(STg, 4)}, off, {srd(WS)}, s{sT + 1} sc1""")
    spin_check("L_fsd")
    a("s_waitcnt vmcnt(0)\nL_fsc:")
    for m in range(4): a(f"v_pk_mul_f32 {vr(AC + 2 * m, 2)}, {vr(STg + 2, 2)}, {vr(CS + 2 * m, 2)} op_sel_hi:[0,1]")
    a(f"""v_cmp_ne_u32 vcc, s{sNON}, v{STg + 3}
    s_cbranch_vccnz L_fs
    L_fsd:""")
    c("(x - mean) . w, exchange through LDS, h = silu(gate) * up")
    for n in range(7):
        a(f"s_waitcnt lgkmcnt({6 - n})")
        for t in range(2):
            a(f"v_mfma_f32_16x16x32_bf16 {vr(AC + 4 * t, 4)}, {vr(WF + 8 * n + 4 * t, 4)}, {vr(XFr + 4 * n, 4)}, {vr(AC + 4 * t, 4)}")
    stamp(5)
    a(f"v_mul_f32 v15, {f2u(LN2 * LN2):#x}, v{STg}\nv_mul_f32 v15, v15, v{STg}")
    setexec(0x00010001, 0x00010001)
    a(f"ds_write_b128 v12, {vr(AC, 4)} offset:{L_FEX}\nds_write_b128 v12, {vr(AC + 4, 4)} offset:{L_FEX + 64}")
    fullexec()
    a(f"""s_waitcnt lgkmcnt(0)
    s_barrier
    ds_read2_b32 v[2:3], v13 offset0:0 offset1:64
    ds_read2_b32 v[6:7], v13 offset0:32 offset1:96
    s_waitcnt vmcnt(0)""")
    perms = []
    for Tt in range(8):
        for m in range(4):
            perms.append(f"v_perm_b32 v{DF + 4 * Tt + m}, v{DR + 8 * m + 4 + (Tt >> 1)}, v{DR + 8 * m + (Tt >> 1)}, s{sSEL + (Tt & 1)}")
    Y = 204
    emit(perms, 12)
    a(f"""s_waitcnt lgkmcnt(0)
    v_add_f32 v2, v2, v3
    v_mul_f32 v3, v{STg}, v2
    v_exp_f32 v3, v3
    v_add_f32 v6, v6, v7
    v_add_f32 v3, 1.0, v3
    v_rcp_f32 v3, v3
    v_mul_f32 v2, v2, v6
    v_mul_f32 v2, v2, v15
    v_mul_f32 v2, v2, v3""")
    emit(perms, 2)
    a(f"""v_mov_b32_dpp v3, v2 quad_perm:[1,1,3,3] {FULL}
    v_cvt_pk_bf16_f32 v2, v2, v3""")
    emit(perms, 2)
    for m in range(4): a(f"v_mov_b32_dpp v{HF + m}, v2 row_newbcast:{2 * m} {FULL}")
    emit(perms, 2)
    c("h . w_down for 112 columns per wave, publish P")
    for Tt in range(8):
        a(f"v_mfma_f32_16x16x32_bf16 {vr(Y + 4 * Tt, 4)}, {vr(HF, 4)}, {vr(DF + 4 * Tt, 4)}, 0")
        emit(perms, 3 if Tt < 4 else 2)
    a(f"""v_mov_b32 v{AC + 2}, s{sNON}
    v_cvt_pk_bf16_f32 v{AC}, v{Y}, v{Y + 4}
    v_cvt_pk_bf16_f32 v{AC + 1}, v{Y + 8}, v{Y + 12}""")
    setexec(0x3fff0000, 0)
    a(f"""v_cvt_pk_bf16_f32 v{AC}, v{Y + 16}, v{Y + 20}
    v_cvt_pk_bf16_f32 v{AC + 1}, v{Y + 24}, v{Y + 28}
    s_mov_b32 exec_lo, 0x3fff3fff
    buffer_store_dwordx4 {vr(AC, 4)}, v8, {srd(WS)}, s{sPO} offen sc1""")
    stamp(6)
    a("s_branch L_fin" if stamps else "s_endpgm")
    a("L_codeend:")
    body = hazard.fix(a.text(), verbose="-v" in sys.argv)
    txt = single(body, NWG, 256, lds=LDS, vgpr=256, sgpr=102)
    txt = txt.replace("; @launch", DOC + "; @launch", 1)
    return txt.replace(".text\n", ".text\n.p2align 12\n", 1)

if __name__ == "__main__":
    open("kf.s", "w").write(gen())
    open("kf_st.s", "w").write(gen(stamps=True))
```

```python
import sys
from asmlib import *
import hazard, align
import struct

O_CERT = 0x8000; O_JC = 0xC000; O_KEY = 0x10000; O_ST = 0x20000; O_P = 0x40000; O_G = 0x80000; O_PACE = 0xE000; O_C2 = 0x160000
O_STAMP = 0x1A0000; WS_SIZE = 0x1A0000
GROW = 1024; GT1 = 64 * GROW
XBYTES = 2048 * 896
WBYTES = 448 * 3584
L_EO = 0; L_KEY = 16384; L_KEY2 = 16388; L_ROW = 16896; L_FS = 18432
L_WR = 0
L_FEX = 57344; L_FKEY = 57344 + 512; L_FROW = 57344 + 1024; LDS = 57344 + 1024 + 4096
NWG = 249; NREP = 248
SPIN = 0x10000
def f2u(x): return struct.unpack("<I", struct.pack("<f", x))[0]
LOG2E = 1.4426950408889634
LN2 = 0.6931471805599453
def bf(x):
    u = f2u(x)
    return (u + 0x7fff + ((u >> 16) & 1)) >> 16
def vr(b, n=1): return f"v{b}" if n == 1 else f"v[{b}:{b + n - 1}]"
FULL = "row_mask:0xf bank_mask:0xf"
RED = ["row_shr:1 row_mask:0xf", "row_shr:2 row_mask:0xf", "row_shr:4 row_mask:0xf", "row_shr:8 row_mask:0xf", "row_bcast:15 row_mask:0xa", "row_bcast:31 row_mask:0xc"]
CHEB = "op_sel_hi:[0,1,1] neg_lo:[0,0,1] neg_hi:[0,0,1]"

def gen(stamps=False, out_sc="", psleep=1, pt=False, early=1, ilv=10, fsleep=0, spin=SPIN, pad=0, ppsleep=0, ks=5,
        mainstop=0, al=32, kill='', fbar=(4,), rbar=1, pre=6, wdpos=0, fdel=0, swz=True, rrev=True, gsleep=2,
        glate=0, glate2=10, mgap=7, mgap2=8, wdfirst=False, keyp=12, pfpos=1, fnear=False, stpos=16, wb=0, ldsz=LDS, jsleep=16, jsleep2=24, frep=0, ppos=(2, 4), wdq=False, permf=False, prefill=True, r0early=True, gpt=0, pace=0, paceq=10, unpe=True, ilm=True, dep=2, helper=False, hsleep=2, h0=34, kpt=1, ab=0, n0=4, sfirst=False, pfrows=160, bpos=1, xe=0, ackw=True):
    rot = 0; rpf = False; rpfpos = 0
    a = Asm()
    X, WS, OUT, WR, PF, WD = 12, 16, 20, 24, 4, 8
    sW, sNON, sP, sPAR, sMSK, sTAU, sALT, sQ, sSTR = 28, 29, 30, 31, 32, 33, 34, 35, 36
    sTH, sT1, sM, sIDX, sCNT, sKEY, sONE = 37, 38, 39, 40, 41, 42, 43
    sT = 44
    sSTO, sKO, sCO, sG0, sG1, sGA, sGB, sCA = 52, 53, 54, 55, 56, 57, 58, 59
    sSGL, sSGH, sC2, sM1, sLG = 24, 25, 26, 27, 92
    sRO = 94
    sER = 98
    sSTAMP = 60
    srd = lambda r: f"s[{r}:{r + 3}]"
    def stamp(k):
        if stamps: a(f"s_memrealtime s[{sSTAMP + 2 * k}:{sSTAMP + 2 * k + 1}]")
    def setexec(lo, hi):
        if hi == 0 and lo < 0x80000000: a(f"s_mov_b64 exec, {lo:#x}")
        else: a(f"s_mov_b32 exec_lo, {lo:#x}\ns_mov_b32 exec_hi, {hi:#x}")
    def fullexec(): a("s_mov_b64 exec, -1")
    def spin_check(lab_out):
        a(f"s_add_u32 s{sCNT}, s{sCNT}, 1\ns_cmp_gt_u32 s{sCNT}, {spin}\ns_cbranch_scc1 {lab_out}")
    def emit(lst, n):
        for _ in range(min(n, len(lst))): a(lst.pop(0))
    def L(s): return [x.strip() for x in s.split("\n") if x.strip()]
    def sleep(n): return f"s_sleep {n}" if n else ""
    def write_stamps():
        if not stamps: return
        fullexec()
        a("s_waitcnt lgkmcnt(0)")
        for k in range(16): a(f"v_mov_b32 v{16 + k}, s{sSTAMP + 2 * k}")
        a(f"""s_lshl2_add_u32 s{sT}, s2, s{sW}
        s_lshl_b32 s{sT}, s{sT}, 6
        s_add_u32 s{sT}, s{sT}, {O_STAMP}
        s_mov_b32 s{WS + 2}, 0x200000""")
        setexec(1, 0)
        for k in range(4): a(f"buffer_store_dwordx4 v[{16 + 4 * k}:{19 + 4 * k}], off, {srd(WS)}, s{sT} offset:{16 * k}")
    def gupf():
        NW = 24 if rpf else 16
        nr, lo = (96 // NW, 32) if rot else (-(-pfrows // NW), 999)
        r0 = 64 if rot else 224 - nr * NW
        a(f"""s_lshr_b32 s{sT}, s{sW}, 1
        s_lshl1_add_u32 s{sT}, s{sQ}, s{sT}
        {f"s_min_u32 s{sT}, s{sT}, 47" if rpf else f"s_and_b32 s{sT}, s{sT}, 31"}
        s_sub_u32 s{sT + 1}, s{sT}, {NW}
        s_cselect_b32 s{sT}, s{sT}, s{sT + 1}
        s_cselect_b32 s{sT + 1}, {r0}, {224 + r0}
        s_mul_i32 s{sT}, s{sT}, {nr}
        s_cmp_ge_u32 s{sT}, {lo}
        s_cselect_b32 s{sT + 4}, 64, 0
        s_add_u32 s{sT}, s{sT}, s{sT + 1}
        s_add_u32 s{sT}, s{sT}, s{sT + 4}
        s_mul_i32 s{sT}, s{sT}, 3584
        s_mul_i32 s{sT + 1}, s{sTAU}, 448
        s_and_b32 s{sT + 1}, s{sT + 1}, 0xffffff80
        s_add_u32 s{sT}, s{sT}, s{sT + 1}
        v_lshrrev_b32 v252, 2, v1
        v_mul_u32_u24 v252, 3584, v252
        v_and_b32 v253, 3, v0
        v_lshl_add_u32 v252, v253, 7, v252""")
        mk = (1 << (4 * nr)) - 1 if 'p' not in kill else 1
        setexec(mk & 0xffffffff, mk >> 32)
        a(f"buffer_load_dword v255, v252, {srd(PF)}, s{sT} offen")
        fullexec()

    vL, vG, vC, vN = 1, 4, 5, 254
    vOA, vOM, vOM0, vSA, vKA, vFA, vC0, vLWr, vLRd, X0 = (243, 251), (244, 252), 245, 246, 247, 249, 242, 240, 241, 250
    AF = 192; HT = 128
    V1 = dict(n=1, XT=152, SG=160, KY=164, RSB=96, H=112, XF=128, GG=24, FR=176, ACC=16)
    V2 = dict(n=2, XT=152, SG=84, KY=88, RSB=224, H=96, XF=160 + 8, GG=16, FR=64, ACC=48)
    V2["XF"] = 128; V2["XT"] = 160; V2["RSB"] = 176
    so = lambda k: "0" if k == 0 else f"s{sRO + k}"
    def tile_addr(rt, side, r):
        if side == 0: return f"v{vOA[rt]}", so(r), ""
        if rt == 0 and r == 0: return f"v{vOM0}", "0", ""
        return f"v{vOM[rt]}", so(3 - r), ""
    def xloads(V):
        l = []
        for rt in range(V["n"]):
            for side in range(2):
                for r in range(4):
                    va, so_, of = tile_addr(rt, side, r)
                    l.append(f"buffer_load_dword v{V['XT'] + 8 * rt + 4 * side + r}, {va}, {srd(X)}, {so_} offen {of}")
        return l
    vCA = 253
    def ldpace(V):
        if not pace: return []
        return [f"""v_mov_b32 v{V['KY'] + 2}, s{sNON}
        s_mov_b64 exec, 0xff
        s_bitset0_b32 exec_lo, s{sTAU}
        buffer_load_dword v{V['KY'] + 2}, v{vCA}, {srd(WS)}, s{sCO} offen sc1
        s_mov_b64 exec, -1"""]
    def ldst(V): return f"buffer_load_dwordx4 {vr(V['SG'], 4)}, v{vSA}, {srd(WS)}, s{sSTO} offen sc1"
    def preA(V):
        t0 = 144
        l = L(f"""s_add_u32 s{sT + 3}, s{sTH}, s{sW}
        s_lshl4_add_u32 s{sT}, s{sT + 3}, s{sT1}
        v_lshl_add_u32 v{t0}, v{vG}, 9, s{sT}
        s_mul_i32 s{sT + 1}, s{sM}, 56
        v_max_u32 v2, 2, v{vC}
        s_sub_u32 s{sT + 1}, s{sT + 1}, 8
        v_lshl_add_u32 v2, v2, 2, s{sT + 1}
        s_movk_i32 s{sT + 2}, 896
        v_mad_u32_u24 v{vOA[0]}, v{t0}, s{sT + 2}, v2
        v_sub_u32 v{vOM[0]}, {(2048 - 384) * 896 + 892}, v{vOA[0]}
        v_sub_u32 v{vSA}, 0, v{t0}
        v_and_b32 v{vSA}, 0x7ff, v{vSA}
        v_sub_u32 v2, 892, v2
        v_mad_u32_u24 v{vOM0}, v{vSA}, s{sT + 2}, v2
        v_and_b32 v2, 3, v0
        v_lshl_add_u32 v{t0}, v2, 7, v{t0}""")
        if V["n"] == 2:
            l += L(f"""v_bfe_u32 v3, v0, 3, 1
            v_lshl_add_u32 v{t0}, v3, 6, v{t0}
            v_add_u32 v{vOA[1]}, {64 * 896}, v{vOA[0]}
            v_subrev_u32 v{vOM[1]}, {64 * 896}, v{vOM[0]}""")
        l += L(f"""v_bfe_i32 v2, v0, 2, 1
        v_xor_b32 v{t0}, v{t0}, v2
        v_sub_u32 v{t0}, v{t0}, v2
        v_and_b32 v{vSA}, 127, v{t0}
        v_lshlrev_b32 v{vSA}, 8, v{vSA}
        v_bfe_u32 v2, v{t0}, 7, 4
        v_lshl_add_u32 v{vSA}, v2, 4, v{vSA}
        s_mov_b32 s{sSTO}, {O_ST}
        s_mov_b32 s{sMSK}, 0xffff0000""")
        for k in range(1, 4): l.append(f"s_mov_b32 s{sRO + k}, {k * 114688}")
        return l
    def preB(V):
        return ([f"v_lshlrev_b32 v{vCA}, 7, v{vL}", f"s_lshl_b32 s{sCO}, s{sTAU}, 10", f"s_add_u32 s{sCO}, s{sCO}, {O_PACE}"] if pace else []) + L(f"""v_lshlrev_b32 v{vKA}, {ks}, v{vC}
        s_lshl2_add_u32 s{sKO}, s{sTAU}, s{sW}
        s_lshl_b32 s{sKO}, s{sKO}, {4 + ks}
        s_add_u32 s{sKO}, s{sKO}, {O_KEY}
        s_mov_b32 s{OUT + 2}, s{X + 2}
        s_mov_b32 s{OUT + 3}, 0x20000
        v_and_b32 v3, 32, v0
        v_mul_u32_u24 v3, {(4 * GROW - 128) // 32}, v3
        v_lshl_add_u32 v{vFA}, v{vL}, 2, v3
        s_lshl2_add_u32 s{sG0}, s{sT1}, s{sW}
        s_lshl_b32 s{sG0}, s{sG0}, 7
        s_add_u32 s{sG0}, s{sG0}, s{sM}
        s_lshl_b32 s{sG0}, s{sG0}, 7
        s_add_u32 s{sG0}, s{sG0}, {O_G}
        s_add_u32 s{sG1}, s{sG0}, {8 * GROW}
        s_mov_b32 s{sLG}, {f2u(-LOG2E):#x}
        v_lshlrev_b32 v{vLRd}, 4, v{vL}
        v_bfe_u32 v2, v0, 4, 1
        v_lshlrev_b32 v2, 10, v2
        v_lshl_add_u32 v2, v{vC}, 4, v2
        v_bfe_u32 v3, v0, 5, 1
        v_lshl_add_u32 v2, v3, 8, v2
        v_lshrrev_b32 v3, 6, v0
        v_lshl_add_u32 v{vLWr}, v3, 11, v2""")
    def genH(V):
        t1_, t2_, t3_, c1, c2 = 145, 146, 147, 148, 150
        Q0_, Q1_ = HT, HT + 8
        l = L(f"""s_add_u32 s{sT + 3}, s{sTH}, s{sW}
        v_lshl_add_u32 v{t1_}, v{vC}, 3, s{sT + 3}
        v_cvt_f32_u32 v{t1_}, v{t1_}
        v_mul_f32 v{t1_}, {f2u(-1 / 128):#x}, v{t1_}
        v_lshlrev_b32 v{t3_}, 2, v{vG}
        v_cvt_f32_u32 v{t3_}, v{t3_}""")
        for rt in range(V["n"]):
            H = V["H"] + 16 * rt
            if rt: l.append(f"v_add_f32 v{t1_}, {f2u(-4 / 128):#x}, v{t1_}")
            l += L(f"""v_mul_f32 v3, v{t3_}, v{t1_}
            v_mul_f32 v{t2_}, {f2u(16.0):#x}, v{t1_}
            v_cos_f32 v{c1}, v{t1_}
            v_cos_f32 v{c2}, v{t2_}""")
            for m in range(2):
                l += L(f"""v_cos_f32 v{Q0_ + 2 * m}, v3
                v_sin_f32 v{Q0_ + 2 * m + 1}, v3
                v_add_f32 v2, v3, v{t2_}
                v_cos_f32 v{Q1_ + 2 * m}, v2
                v_sin_f32 v{Q1_ + 2 * m + 1}, v2""")
                if m == 0: l.append(f"v_add_f32 v3, v3, v{t1_}")
            l += [f"v_add_f32 v{c1}, v{c1}, v{c1}", f"v_add_f32 v{c2}, v{c2}, v{c2}"]
            for m in range(2, 4):
                for Qb in (Q0_, Q1_): l.append(f"v_pk_fma_f32 {vr(Qb + 2 * m, 2)}, {vr(c1, 2)}, {vr(Qb + 2 * m - 2, 2)}, {vr(Qb + 2 * m - 4, 2)} {CHEB}")
            def packH(k, Qb):
                for m in range(4): l.append(f"v_cvt_pk_bf16_f32 v{H + 4 * k + m}, v{Qb + 2 * m}, v{Qb + 2 * m + 1}")
            packH(0, Q0_); packH(1, Q1_)
            for k in range(2, 4):
                cur, prev = (Q1_, Q0_) if k % 2 == 0 else (Q0_, Q1_)
                for m in range(4): l.append(f"v_pk_fma_f32 {vr(prev + 2 * m, 2)}, {vr(c2, 2)}, {vr(cur + 2 * m, 2)}, {vr(prev + 2 * m, 2)} {CHEB}")
                packH(k, prev)
        l += [f"s_lshl_b32 s{sT}, s{sW}, 31", f"s_or_b32 s{sT}, s{sT}, s{sONE}"]
        l.append("s_mov_b64 exec, 0xffff\n" + "".join(f"v_mov_b32 v{V['H'] + 16 * rt}, s{sT}\n" for rt in range(V["n"])) + "s_mov_b64 exec, -1")
        return l
    def mix(work, mem, gap):
        cnt = 0
        while work:
            if cnt % gap == gap - 1 and mem: emit(mem, 1)
            emit(work, 1); cnt += 1
        emit(mem, 99)
    sOD, sOM, sNI = sT, sT + 1, sT + 3
    PR = 224; vPA = 248; sPA = 4; sGAM = 8; sFIN = 9; sOA = 10; TV = 90
    def psetup():
        a(f"""s_and_b32 s{sT + 2}, s{sW}, 1
        s_mul_i32 s{sGAM}, s{sM}, 7
        s_sub_u32 s{sT + 5}, 105, s{sGAM}
        s_cmp_ge_u32 s{sW}, 2
        s_cselect_b32 s{sGAM}, s{sT + 5}, s{sGAM}
        s_add_u32 s{sGAM}, s{sT + 2}, s{sGAM}
        s_mul_i32 s{sT + 5}, s{sGAM}, 147
        s_lshr_b32 s{sT + 5}, s{sT + 5}, 12
        s_mul_i32 s{sPA}, s{sT + 5}, 224
        s_lshl3_add_u32 s{sPA}, s{sGAM}, s{sPA}
        s_bitcmp1_b32 s{sGAM}, 0
        s_cselect_b32 s{sT + 5}, 216, 0
        s_add_u32 s{sPA}, s{sPA}, s{sT + 5}
        s_add_u32 s{sPA}, s{sPA}, {O_P}
        s_add_u32 s{sPA + 1}, s{sPA}, {16 * 1792}
        s_add_u32 s{sPA + 2}, s{sPA}, {32 * 1792}
        s_add_u32 s{sPA + 3}, s{sPA}, {48 * 1792}
        v_lshrrev_b32 v2, 2, v{vL}
        v_mul_u32_u24 v2, 1792, v2
        v_and_b32 v13, 3, v0
        s_sub_u32 s{sT + 5}, 3, s{sT + 2}
        v_min_u32 v13, s{sT + 5}, v13
        v_lshl_add_u32 v{vPA}, v13, 4, v2
        v_mov_b32 v{PR + 12}, 0
        v_mov_b32 v{PR + 13}, 0
        v_mov_b32 v{PR + 14}, s{sNON}
        v_lshl_add_u32 v13, v13, 3, v{vG}
        v_lshlrev_b32 v12, 1, v13
        s_lshl_b32 s{sOA}, s{sGAM}, 3""")
    PCOPY = 56 * 1792
    def ploads(PR=PR):
        for n in range(4):
            if n == 3: a("s_mov_b32 exec_hi, 0")
            a(f"buffer_load_dwordx3 {vr(PR + 4 * n, 3)}, v{vPA}, {srd(WS)}, s{sPA + n} offen sc1")
    def unpack(V):
        l = []
        for k in range(8 * V["n"]):
            o = V["XF"] + 8 * (k >> 2) + (k & 3)
            l += [f"v_and_b32 v{o}, s{sMSK}, v{V['XT'] + k}", f"v_lshlrev_b32 v{o + 4}, 16, v{V['XT'] + k}"]
        return l
    def phase2(V, gl, unp):
        n = V["n"]; x_ = str(n)
        XT, SG, KY, RSB, XF, GG, FR, ACC2 = [V[k] for k in ("XT", "SG", "KY", "RSB", "XF", "GG", "FR", "ACC")]
        def gloads():
            for k in range(8):
                a(f"buffer_load_dword v{FR + k}, v{vFA}, {srd(WS)}, s{sG0 + (k >> 2)} offen offset:{GROW * (k & 3)} sc1")
            setexec(0xffff, 0)
            a(f"buffer_load_dwordx2 {vr(KY, 2)}, v{vKA}, {srd(WS)}, s{sKO} offen sc1")
            fullexec()
        a(f"v_mov_b32 v3, 0\nv_mov_b32 v{KY + 1}, s{sNON}")
        if gl < 0:
            stamp(7); gloads(); a("s_waitcnt vmcnt(9)")
        stamp(6)
        a(f"""s_branch L_psc{x_}
        L_ps{x_}:
        {sleep(psleep)}
        {ldst(V)}""")
        spin_check("L_psd" + x_)
        a(f"""s_waitcnt vmcnt(0)
        L_psc{x_}:
        v_cmp_ne_u32 vcc, s{sNON}, v{SG + 3}
        s_cbranch_vccnz L_ps{x_}
        L_psd{x_}:""")
        stamp(15)
        gl_list = []
        for k in range(8): gl_list.append(f"buffer_load_dword v{FR + k}, v{vFA}, {srd(WS)}, s{sG0 + (k >> 2)} offen offset:{GROW * (k & 3)} sc1")
        gl_list.append(f"s_mov_b64 exec, 0xffff\nbuffer_load_dwordx2 {vr(KY, 2)}, v{vKA}, {srd(WS)}, s{sKO} offen sc1\ns_mov_b64 exec, -1")
        step = 0; pend = []; cur = []
        for rt in range(n):
            for side in range(2):
                rb = RSB + 8 * side
                bc = []
                for r in range(4):
                    ln = 8 * rt + 4 * side + r
                    bc += [f"v_mov_b32_dpp v{rb + r}, v{SG} row_newbcast:{ln} {FULL}", f"v_mov_b32_dpp v{rb + 4 + r}, v{SG + 1} row_newbcast:{ln} {FULL}"]
                for h in range(2):
                    for par in range(2):
                        if step == gl:
                            stamp(7); cur = gl_list
                            if not ilm: emit(cur, 99)
                        emit(cur, 1)
                        if par == 0:
                            emit(bc, 4); emit(unp, 4)
                        o = 16 * rt + 8 * side + 4 * par + 2 * h
                        x = XF + o; g = GG + o; tm = AF + 2 * (step & 1)
                        step += 1
                        a(f"""v_pk_fma_f32 {vr(g, 2)}, {vr(x, 2)}, {vr(rb + 2 * h, 2)}, {vr(rb + 4 + 2 * h, 2)}
                        v_exp_f32 v{tm}, v{g}
                        v_exp_f32 v{tm + 1}, v{g + 1}""")
                        emit(cur, 1)
                        emit(pend, 1)
                        a(f"""v_pk_add_f32 {vr(tm, 2)}, {vr(tm, 2)}, 1.0 op_sel_hi:[1,0]
                        v_rcp_f32 v{tm}, v{tm}
                        v_rcp_f32 v{tm + 1}, v{tm + 1}""")
                        emit(cur, 1)
                        pend.append(f"v_pk_mul_f32 {vr(g, 2)}, {vr(g, 2)}, {vr(tm, 2)}")
        emit(cur, 99)
        emit(pend, 9)
        stamp(13)
        if gl < 8 * n: a(f"s_branch L_pgc{x_}")
        else: stamp(7)
        a(f"L_pg{x_}:")
        gloads()
        spin_check("L_pgd" + x_)
        a(f"""L_pgc{x_}:
        s_waitcnt vmcnt(0)
        ds_write_b128 v{vLWr}, {vr(FR, 4)} offset:{L_FS}
        ds_write_b128 v{vLWr}, {vr(FR + 4, 4)} offset:{L_FS + 512}
        v_bitop3_b32 v2, v{FR}, v{FR + 1}, s{sNON} bitop3:0x7e
        v_bitop3_b32 v8, v{FR + 2}, v{FR + 3}, s{sNON} bitop3:0x7e
        v_bitop3_b32 v9, v{FR + 4}, v{FR + 5}, s{sNON} bitop3:0x7e
        v_bitop3_b32 v10, v{FR + 6}, v{FR + 7}, s{sNON} bitop3:0x7e
        v_or3_b32 v2, v2, v8, v9
        v_cmp_ne_u32 s[{sT}:{sT + 1}], s{sNON}, v{KY + 1}
        v_or_b32 v2, v2, v10
        v_cmp_ne_u32 vcc, 0, v2
        s_or_b32 vcc_lo, vcc_lo, vcc_hi
        s_and_b32 vcc_lo, vcc_lo, 0x00010001
        s_or_b32 vcc_lo, vcc_lo, s{sT}
        s_cbranch_scc0 L_pgd{x_}
        {sleep(gsleep)}
        s_waitcnt lgkmcnt(0)
        s_branch L_pg{x_}
        L_pgd{x_}:""")
        setexec(0xffff, 0)
        a(f"ds_max_u32 v3, v{KY} offset:{L_KEY2}")
        fullexec()
        stamp(8)
        a("s_waitcnt lgkmcnt(0)\ns_barrier")
        for k in range(8): a(f"ds_read_b128 {vr(AF + 4 * k, 4)}, v{vLRd} offset:{L_FS + 1024 * k}")
        a(f"ds_read_b32 v{KY}, v3 offset:{L_KEY2}")
        sPM = sT + 4; SH = FR
        a(f"s_mov_b32 s{sPM}, 0xfffcfffc\ns_mov_b32 s{sPM + 1}, s{sPM}")
        def mf(rt, k):
            d = ACC2 + 8 * rt + 4 * (k & 1)
            return f"v_mfma_f32_16x16x32_bf16 {vr(d, 4)}, {vr(V['H'] + 16 * rt + 4 * (k >> 1), 4)}, {vr(AF + 4 * k, 4)}, {'0' if k < 2 else vr(d, 4)}"
        for k in range(8):
            a(f"s_waitcnt lgkmcnt({8 - k})")
            a(mf(0, k))
        idxc = L(f"""s_waitcnt lgkmcnt(0)
        v_readfirstlane_b32 s{sKEY}, v{KY}
        s_lshl4_add_u32 s{sT + 2}, s{sTH}, s{sT1}
        s_andn2_b32 s{sIDX}, 0x7ff, s{sKEY}
        s_sub_u32 s{sNI}, 0, s{sIDX}
        s_xor_b32 s{sOD}, s{sIDX}, s{sT + 2}
        s_xor_b32 s{sOM}, s{sNI}, s{sT + 2}
        s_and_b32 s{sOD}, s{sOD}, {0x4f if n == 1 else 0x0f}
        s_and_b32 s{sOM}, s{sOM}, {0x4f if n == 1 else 0x0f}
        s_cmp_ge_u32 s{sW}, 2
        s_cselect_b32 s{sFIN}, s{sOM}, s{sOD}""")
        def calc(rt, side):
            l = []; o = 16 * rt + 8 * side
            if side == 0:
                for r in range(4): l.append(f"v_mov_b32_dpp v{SH + 4 * rt + r}, v{ACC2 + 8 * rt + 4 + r} row_shr:1 {FULL}")
            for h in range(2):
                for par in range(2):
                    src = SH + 4 * rt + 2 * h if (par and side == 0) else ACC2 + 8 * rt + 4 * par + 2 * h
                    l.append(f"v_pk_fma_f32 {vr(GG + o + 4 * par + 2 * h, 2)}, {vr(src, 2)}, {vr(GG + o + 4 * par + 2 * h, 2)}, {vr(XF + o + 4 * par + 2 * h, 2)}")
                for j in range(2):
                    r = 2 * h + j
                    l.append(f"v_cvt_pk_bf16_f32 v{XT + 8 * rt + 4 * side + r}, v{GG + o + 4 + r}, v{GG + o + r}")
            return l
        def stores(rt, side):
            l = []
            for r in range(4):
                va, so_, of = tile_addr(rt, side, r)
                l.append(f"buffer_store_dword v{XT + 8 * rt + 4 * side + r}, {va}, {srd(OUT)}, {so_} offen {out_sc}" if 's' not in kill else "s_nop 0")
            return l
        def maybe_p(k):
            if k != ppos[n - 1] or 'o' in kill: return
            a(f"s_cmp_lg_u32 s{sFIN}, 0\ns_cbranch_scc1 L_nopl{x_}")
            fullexec()
            a(f"""s_mul_i32 s11, s{sIDX}, 896
            s_add_u32 s{sOA}, s{sOA}, s11
            buffer_load_ushort v{TV + 1}, v12, {srd(X)}, s{sOA} offen
            s_and_b32 s11, s{sIDX}, 127
            s_lshl_b32 s11, s11, 8
            s_lshr_b32 s{sT + 2}, s{sIDX}, 7
            s_lshl4_add_u32 s11, s{sT + 2}, s11
            s_add_u32 s11, s11, {O_ST}
            buffer_load_dwordx2 {vr(TV + 2, 2)}, off, {srd(WS)}, s11 sc1""")
            ploads()
            a(f"s_mov_b64 exec, s[{sPM}:{sPM + 1}]\nL_nopl{x_}:")
        if n == 1:
            emit(idxc, 8 if ppos[0] else 99)
            c0 = calc(0, 1); c1 = calc(0, 0)
            emit(c0, 99); emit(c1, 4)
            a(f"s_mov_b64 exec, s[{sPM}:{sPM + 1}]")
            maybe_p(0)
            st = stores(0, 1)
            while st: emit(st, 1); emit(c1, 2)
            emit(idxc, 99)
            maybe_p(1)
            emit(stores(0, 0), 99)
            maybe_p(2)
        else:
            w = idxc[:8] + calc(0, 1)
            for k in range(8):
                a(mf(1, k)); emit(w, 2)
            c1 = calc(0, 0); c3 = calc(1, 0)
            emit(c1, 4); emit(idxc[8:], 9); emit(c3, 4)
            a(f"s_mov_b64 exec, s[{sPM}:{sPM + 1}]")
            for k, (st, nx) in enumerate(((stores(0, 1), c1), (stores(0, 0), calc(1, 1)), (stores(1, 1), c3), (stores(1, 0), []))):
                maybe_p(k)
                while st: emit(st, 1); emit(nx, 2)
            maybe_p(4)
        fullexec()
        stamp(9)
        if 'o' in kill: a("s_branch L_fin")
        if stamps: a(f"s_mov_b32 s{sSTAMP + 2 * 14}, s{sCNT}")
        a(f"""s_mul_i32 s{sT + 2}, s{sOD}, s{sOM}
        s_cmp_lg_u32 s{sT + 2}, 0
        s_cbranch_scc1 {"L_wb" if wb else "L_fin"}
        v_lshlrev_b32 v2, 5, v{vC}""")
        for side, st in ((0, sIDX), (1, sNI)):
            a(f"""s_bfe_u32 s{sT + 4}, s{st}, 0x20004
            s_cmp_lg_u32 s{sT + 4}, s{sW}
            s_cbranch_scc1 L_norow{side}{x_}
            s_bfe_u32 s{sT + 4}, s{st}, 0x20009
            v_cmp_eq_u32 vcc, s{sT + 4}, v{vG}
            s_mov_b64 exec, vcc""")
            for rt in range(n):
                if rt: a(f"s_bitcmp0_b32 s{st}, 6\ns_cbranch_scc1 L_rowd{side}{x_}")
                for m in range(2): a(f"ds_write_b128 v2, {vr(ACC2 + 8 * rt + 4 * m, 4)} offset:{L_ROW + 512 * side + 16 * m}")
            a(f"L_rowd{side}{x_}:")
            fullexec()
            a(f"L_norow{side}{x_}:")
    sFT, sSEL, sPO, sXO, sDO, sLR = 31, 24, 36, 37, 26, 30
    WF = 16; DR = 72; DF = 104; CS = 140; XFr = 148; STg = 176; AC = 180; HF = 188; Y = 72; KYf = 192; ONES = 196
    def wdl(r0=0, r1=8):
        for r in range(r0, r1):
            a(f"buffer_load_dwordx4 {vr(DR + 4 * r, 4)}, v7, {srd(WD)}, s{sDO + (r >> 2)} offen offset:{896 * (r & 3)}")
    def ffn_pro():
        a(f"""L_ffn:
        {"s_branch L_end" if 'f' in kill else ""}
        s_load_dwordx2 s[{WD}:{WD + 1}], s[0:1], 72
        s_mul_i32 s{sFT}, s{sTAU}, 7
        s_add_u32 s{sFT}, s{sFT}, s{sQ}
        s_sub_u32 s{sFT}, s{sFT}, 24
        s_lshr_b32 s{sT + 2}, s{sW}, 1
        s_mov_b32 s{WD + 2}, s{PF + 2}
        s_mov_b32 s{WD + 3}, 0x20000
        v_mul_u32_u24 v7, {8 * 896}, v{vG}
        v_min_u32 v2, 13, v{vC}
        v_lshl_add_u32 v7, v2, 4, v7
        s_mul_i32 s{sDO}, s{sFT}, {32 * 896}
        s_mul_i32 s{sT + 1}, s{sW}, 224
        s_add_u32 s{sDO}, s{sDO}, s{sT + 1}
        s_add_u32 s{sDO + 1}, s{sDO}, 3584
        s_waitcnt lgkmcnt(0)""")
        stamp(1)
        a(f"s_load_dword s{sNON}, s[{WS}:{WS + 1}], 0")
        if fdel: a(f's_sleep {fdel}')
        if wdfirst: wdl()
    stamp(0)
    a(f"""s_load_dwordx2 s[{X}:{X + 1}], s[0:1], 0
    s_load_dwordx2 s[{WS}:{WS + 1}], s[0:1], 96
    s_load_dwordx2 s[{OUT}:{OUT + 1}], s[0:1], 80
    s_lshr_b32 s{sQ}, s2, 3
    s_cmp_lg_u32 s{sQ}, 24
    s_cbranch_scc1 L_nopf
    s_getpc_b64 s[{sT}:{sT + 1}]
    L_pc:
    v_lshlrev_b32 v2, 6, v0
    v_min_u32 v2, (L_codeend - L_pc - 4), v2
    global_load_dword v{vN}, v2, s[{sT}:{sT + 1}]
    L_nopf:
    v_lshrrev_b32 v2, 6, v0
    v_and_b32 v{vL}, 63, v0
    v_readfirstlane_b32 s{sW}, v2
    s_mov_b32 s{X + 2}, {XBYTES}
    s_mov_b32 s{X + 3}, 0x20000
    s_mov_b32 s{WS + 2}, {WS_SIZE}
    s_mov_b32 s{WS + 3}, 0x20000
    s_mov_b32 s{PF + 2}, {WBYTES}
    s_mov_b32 s{PF + 3}, 0x20000
    s_and_b32 s{sT}, s{sW}, 1
    s_lshl3_add_u32 s{sT}, s{sT}, 56
    s_load_dwordx2 s[{PF}:{PF + 1}], s[0:1], s{sT}
    s_mov_b32 s{sCNT}, 0
    s_mov_b32 s{sONE}, 0x3f803f80
    s_and_b32 s{sTAU}, s2, 7
    v_lshrrev_b32 v{vG}, 4, v{vL}
    v_and_b32 v{vC}, 15, v0
    s_sub_u32 s{sALT}, 16, s{sTAU}
    s_cmp_eq_u32 s{sTAU}, 0
    s_cselect_b32 s{sALT}, 8, s{sALT}
    s_bitcmp1_b32 s2, 3
    s_cselect_b32 s{sP}, s{sALT}, s{sTAU}
    s_and_b32 s{sT + 1}, s2, 0x30
    s_add_u32 s{sP}, s{sP}, s{sT + 1}""")
    if stamps:
        for k in range(1, 16): a(f"s_mov_b32 s{sSTAMP + 2 * k}, 0")
    a(f"""s_cmp_ge_u32 s2, {NREP}
    s_cbranch_scc1 L_jan
    s_cmp_ge_u32 s2, 192
    s_cbranch_scc1 L_ffn
    s_cmp_ge_u32 s2, 64
    s_cbranch_scc1 L_p1a""")
    RX = 16; RW = 44; WL = 72; vS, vQ, vR = 76, 77, 78; ST4 = 80; sSW = 3
    a(f"""s_load_dwordx2 s[{WR}:{WR + 1}], s[0:1], 48
    s_mov_b32 s{WR + 2}, 896
    s_mov_b32 s{WR + 3}, 0x20000
    s_sub_u32 s{sT + 1}, 128, s{sP}
    s_cmp_eq_u32 s{sP}, 0
    s_cselect_b32 s{sT + 1}, 64, s{sT + 1}
    s_cmp_ge_u32 s{sW}, 2
    s_cselect_b32 s{sCA}, s{sT + 1}, s{sP}
    v_bfe_u32 v13, v0, 3, 4
    v_lshl_add_u32 v6, v13, 7, s{sCA}
    v_and_b32 v14, 7, v0
    v_lshlrev_b32 v14, 4, v14
    v_lshlrev_b32 v15, 4, v{vL}
    s_movk_i32 s{sT + 1}, 896
    v_mad_u32_u24 v7, v6, s{sT + 1}, v14
    s_waitcnt lgkmcnt(0)""")
    stamp(1)
    a(f"""buffer_load_dwordx4 {vr(WL, 4)}, v15, {srd(WR)}, 0 offen
    buffer_load_dword v{vN}, off, {srd(WS)}, 0""")
    for cb in range(7):
        if rbar and cb % rbar == 0: a("s_barrier")
        a(f"buffer_load_dwordx4 {vr(RX + 4 * cb, 4)}, v7, {srd(X)}, 0 offen offset:{128 * (6 - cb if rrev else cb)}")
    a("s_branch L_router")
    if fnear:
        ffn_pro()
        a("s_branch L_ffn2")
    a(f"""L_p1a:
    s_load_dwordx2 s[{WD}:{WD + 1}], s[0:1], 72""")
    vXA0, vXA1, vXB0, vXB1, vGA, vLW, vLR0, vLR1, vGB, vK1 = 6, 7, 8, 9, 10, 11, 12, 13, 6, 251
    XR = 16; B = 48; CH = 176; U = 208; M1 = 168; CLR = 208
    P0, P1 = CH, CH + 16
    BF = lambda c_, dp, k: B + ((c_ * 2 + dp) * 4 + k) * 4
    a(f"""s_lshr_b32 s{sPAR}, s2, 7
    s_cmp_eq_u32 s{sP}, 0
    s_cselect_b32 s{sSTR}, 64, 128
    v_lshrrev_b32 v3, 4, v0
    v_mul_u32_u24 v3, s{sSTR}, v3
    v_add_u32 v3, s{sP}, v3
    v_sub_u32 v14, 2048, v3
    v_lshrrev_b32 v2, 11, v14
    v_lshrrev_b32 v14, v2, v14
    v_lshlrev_b32 v2, 4, v{vC}
    s_movk_i32 s{sT + 1}, 896
    v_cmp_gt_u32 vcc, 12, v{vC}
    s_min_u32 s{sT + 5}, s{sP}, s{sPAR}
    s_cmp_eq_u32 s{sT + 5}, {0 if swz else f's{sT + 5}'}
    s_mov_b32 s{sT + 5}, {f2u(1 / 448):#x}
    s_cbranch_scc1 L_nosw
    v_swap_b32 v3, v14
    s_bitset1_b32 s{sT + 5}, 31
    L_nosw:
    v_mad_u32_u24 v{vXA0}, v3, s{sT + 1}, v2
    v_mad_u32_u24 v{vXA1}, v14, s{sT + 1}, v2
    v_cndmask_b32 v{vXB0}, 2.0, v{vXA0}, vcc
    v_cndmask_b32 v{vXB1}, 2.0, v{vXA1}, vcc""")
    vSTEP, vS32, vCO, vCJ = 10, 11, 12, 14
    g0 = L(f"""s_mul_i32 s{sT + 1}, s{sW}, 28
    s_add_u32 s{sT + 1}, s{sT + 1}, s{sPAR}
    s_sub_u32 s{sT + 1}, s{sT + 1}, 3
    v_lshl_add_u32 v3, v{vC}, 1, s{sT + 1}
    v_cvt_f32_i32 v{vSTEP}, v3
    v_mul_f32 v{vSTEP}, s{sT + 5}, v{vSTEP}
    v_lshlrev_b32 v3, 3, v{vG}
    v_cvt_f32_u32 v3, v3
    v_mul_f32 v3, v3, v{vSTEP}
    v_mul_f32 v{vS32}, {f2u(32.0):#x}, v{vSTEP}
    v_cos_f32 v{vCJ}, v{vSTEP}
    v_cos_f32 v{vCO}, v{vS32}""")
    for j in range(2):
        g0 += L(f"""v_cos_f32 v{P0 + 2 * j}, v3
        v_sin_f32 v{P0 + 2 * j + 1}, v3
        v_add_f32 v2, v3, v{vS32}
        v_cos_f32 v{P1 + 2 * j}, v2
        v_sin_f32 v{P1 + 2 * j + 1}, v2""")
        if j == 0: g0 += [f"v_add_f32 v3, v3, v{vSTEP}"]
    g0 += [f"v_add_f32 v{vCJ}, v{vCJ}, v{vCJ}", f"v_add_f32 v{vCO}, v{vCO}, v{vCO}"]
    for j in range(2, 8):
        for Pb in (P0, P1):
            g0.append(f"v_pk_fma_f32 {vr(Pb + 2 * j, 2)}, {vr(vCJ, 2)}, {vr(Pb + 2 * j - 2, 2)}, {vr(Pb + 2 * j - 4, 2)} {CHEB}")
    if early: emit(g0, 999)
    def pk(kk, Pb):
        for c_ in range(2):
            for dp in range(2):
                for mm in range(2):
                    g0.append(f"v_cvt_pk_bf16_f32 v{BF(c_, dp, kk & 3) + 2 * (kk >> 2) + mm}, v{Pb + 2 * (4 * mm + dp) + c_}, v{Pb + 2 * (4 * mm + dp + 2) + c_}")
    pk(0, P0); pk(1, P1)
    for kk in range(2, 7):
        cur, prev = (P1, P0) if kk % 2 == 0 else (P0, P1)
        for m in range(8): g0.append(f"v_pk_fma_f32 {vr(prev + 2 * m, 2)}, {vr(vCO, 2)}, {vr(cur + 2 * m, 2)}, {vr(prev + 2 * m, 2)} {CHEB}")
        pk(kk, prev)
    a("s_waitcnt lgkmcnt(0)")
    stamp(1)
    for n in range(8):
        rr, hf, pc = n >> 2, (n >> 1) & 1, n & 1
        a(f"buffer_load_dwordx4 {vr(XR + 4 * n, 4)}, v{vXA0 + rr + 2 * pc}, {srd(X)}, 0 offen offset:{448 * hf + 256 * pc}")
        if n >= 1: emit(g0, ilv)
    a(f"s_load_dword s{sNON}, s[{WS}:{WS + 1}], 0")
    if pfpos == 0: gupf()
    stamp(14)
    emit(g0, 999)
    sWP = 101
    if wdfirst: wdpos = 9
    else: a(f"""s_mov_b32 s{WD + 2}, {WBYTES}
    s_mov_b32 s{WD + 3}, 0x20000
    s_lshl2_add_u32 s{sWP}, s{sQ}, s{sW}
    s_and_b32 s{sWP}, s{sWP}, 63
    s_mul_i32 s{sWP}, s{sWP}, 3136
    s_mul_i32 s{sT + 1}, s{sTAU}, {224 * 896}
    s_add_u32 s{sWP}, s{sWP}, s{sT + 1}
    v_lshlrev_b32 v7, 7, v{vL}""")
    def wdpf():
        setexec(0x1ffffff if 'd' not in kill else 1, 0)
        a(f"buffer_load_dword v255, v7, {srd(WD)}, s{sWP} offen")
        fullexec()
    MT = CH
    a(f"""v_lshlrev_b32 v2, 2, v{vG}
    v_mul_u32_u24 v2, s{sSTR}, v2
    v_add_u32 v2, s{sP}, v2
    v_mul_u32_u24 v2, v2, v{vC}
    v_mul_u32_u24 v3, s{sSTR}, v{vC}
    v_cvt_f32_u32 v2, v2
    v_cvt_f32_u32 v3, v3
    v_mul_f32 v2, {f2u(1 / 2048):#x}, v2
    v_mul_f32 v3, {f2u(1 / 2048):#x}, v3""")
    for r in range(4):
        a(f"v_cos_f32 v{MT + r}, v2\nv_sin_f32 v{MT + 4 + r}, v2")
        if r < 3: a("v_add_f32 v2, v2, v3")
    if pfpos == 1: gupf()
    a(f"s_mov_b32 s{sT + 2}, {f2u(-LN2):#x}")
    for m in range(4): a(f"v_pk_mul_f32 {vr(MT + 2 * m, 2)}, {vr(MT + 2 * m, 2)}, s[{sT + 2}:{sT + 3}] op_sel_hi:[1,0]")
    a(f"""v_cvt_pk_bf16_f32 v{M1}, v{MT}, v{MT + 1}
    v_cvt_pk_bf16_f32 v{M1 + 1}, v{MT + 2}, v{MT + 3}
    v_cvt_pk_bf16_f32 v{M1 + 2}, -v{MT + 4}, -v{MT + 5}
    v_cvt_pk_bf16_f32 v{M1 + 3}, -v{MT + 6}, -v{MT + 7}
    v_cvt_pk_bf16_f32 v{M1 + 4}, v{MT + 4}, v{MT + 5}
    v_cvt_pk_bf16_f32 v{M1 + 5}, v{MT + 6}, v{MT + 7}
    v_mov_b32 v{M1 + 6}, v{M1}
    v_mov_b32 v{M1 + 7}, v{M1 + 1}
    s_mov_b32 s{sT1}, s{sALT}
    s_lshl_b32 s{sTH}, s{sPAR}, 2
    s_and_b32 s{sM}, s{sQ}, 7
    v_mov_b32 v8, 1.0
    s_cmp_lg_u32 s{sP}, 0
    s_cbranch_scc1 L_m1d""")
    for m in range(4):
        a(f"v_and_b32 v{M1 + 4 + m}, 0xffff0000, v{M1 + m}\nv_xor_b32 v{M1 + m}, v{M1 + 4 + m}, v{M1 + m}")
    a(f"""v_cmp_lt_u32 vcc, 15, v0
    v_lshlrev_b32 v2, 15, v0
    v_and_b32 v2, 0x8000, v2
    v_cndmask_b32 v8, 0, v8, vcc""")
    setexec(0xffff, 0)
    a(f"v_xor_b32 v{M1 + 2}, {bf(LN2):#x}, v2")
    fullexec()
    a("L_m1d:")
    if wdpos == 0: wdpf()
    emit(preA(V1), 99)
    GS = 184 + 16
    sE2 = sT + 6; sGR = 98
    fill = L(f"""v_lshlrev_b32 v2, 18, v{vG}
    s_lshl_b32 s{sT}, s{sW}, 7
    v_lshl_add_u32 v3, v{vC}, 2, s{sT}
    v_add_u32 v{vGA}, v3, v2
    v_add_u32 v3, s{sPAR}, v{vC}
    v_cmp_gt_u32 vcc, 2, v3
    v_sub_u32 v3, 17, v3
    s_sub_u32 s{sT}, 896, s{sT}
    v_cndmask_b32 v3, v3, v{vC}, vcc
    v_lshl_add_u32 v3, v3, 2, s{sT}
    v_add_u32 v{vGB}, v3, v2
    s_lshl4_add_u32 s{sGA}, s{sP}, s{sPAR}
    s_lshl_b32 s{sGA}, s{sGA}, 6
    s_add_u32 s{sGA}, s{sGA}, {O_G}
    s_mov_b32 s{sE2}, 0xfffefffe
    s_mov_b32 s{sE2 + 1}, s{sE2}""")
    for r in range(1, 4): fill.append(f"s_add_u32 s{sGR + r - 1}, s{sGA}, {r * GT1}")
    if prefill: emit(fill, 99)
    SS, QQ, RS, CC = CH, CH + 2, CH + 4, CH + 6
    a(f"""v_mov_b32 v3, 0
    ds_write_b32 v3, v3 offset:{L_KEY2}
    v_lshrrev_b32 v2, 4, v0
    v_and_b32 v14, 7, v0
    v_xor_b32 v2, v2, v14
    v_lshlrev_b32 v2, 4, v2
    v_lshl_add_u32 v{vLW}, v{vC}, 8, v2
    v_xor_b32 v2, v{vC}, v{vG}
    v_lshlrev_b32 v2, 4, v2
    v_lshl_add_u32 v{vLR0}, v{vG}, 8, v2
    v_xor_b32 v{vLR1}, 64, v{vLR0}
    v_mov_b32 v{SS}, 0
    v_mov_b32 v{SS + 1}, 0
    v_mov_b32 v{QQ}, {f2u(448e-5 / 16):#x}
    v_mov_b32 v{QQ + 1}, v{QQ}
    s_cmp_eq_u32 s{sPAR}, 0
    s_movk_i32 s{sSGL}, 0x3f80
    s_cselect_b32 s{sSGL}, 0xbf80, s{sSGL}
    s_cselect_b32 s{sC2}, 0, {f2u(-2.0 / 448):#x}
    s_lshl_b32 s{sSGH}, s{sSGL}, 16""")
    if pfpos == 2: gupf()
    stamp(2)
    NPF = 2 if wdpos == 0 else 1
    def gtouch():
        a(f"""v_lshlrev_b32 v2, 16, v{vC}
        s_lshl2_add_u32 s{sT}, s{sPAR}, s{sW}
        s_lshl3_add_u32 s{sT}, s{sP}, s{sT}
        s_lshl_b32 s{sT}, s{sT}, 7
        s_add_u32 s{sT}, s{sT}, {O_G}""")
        setexec(0xffff, 0)
        a(f"buffer_load_dword v255, v2, {srd(WS)}, s{sT} offen")
        fullexec()
    if gpt == 1:
        gtouch(); NPF += 1
    def scale(rr):
        for m in range(8):
            u = U + 16 * rr + 2 * m
            a(f"v_pk_fma_f32 {vr(u, 2)}, {vr(u, 2)}, {vr(RS, 2)}, {vr(CC, 2)} op_sel:[0,{rr},{rr}] op_sel_hi:[1,{rr},{rr}]")
    for n in range(8):
        rr, hf, pc = n >> 2, (n >> 1) & 1, n & 1
        a(f"s_waitcnt vmcnt({7 - n + NPF})")
        fin = []
        for m in range(4):
            x = XR + 4 * n + m; u = U + 16 * rr + 8 * pc + 2 * m
            a(f"v_dot2c_f32_bf16 v{SS + rr}, s{sONE}, v{x}\nv_dot2c_f32_bf16 v{QQ + rr}, v{x}, v{x}")
            if hf == 0: fin += [f"v_lshlrev_b32 v{u}, 16, v{x}", f"v_and_b32 v{u + 1}, s{sMSK}, v{x}"]
            else: fin += [f"v_dot2c_f32_bf16 v{u}, s{sSGL}, v{x}", f"v_dot2c_f32_bf16 v{u + 1}, s{sSGH}, v{x}"]
        if r0early and n % 4 == 3:
            red = []
            for m in range(4): red += [f"v_add_f32_dpp v{v}, v{v}, v{v} row_ror:{1 << m} {FULL}" for v in (SS + rr, QQ + rr)]
            emit(fin, 2)
            while red:
                emit(red, 2); emit(fin, 1)
            if rr == 1: stamp(3)
            a(f"""v_mul_f32 v2, v{SS + rr}, v{SS + rr}
            v_fmac_f32 v{QQ + rr}, {f2u(-1 / 448):#x}, v2
            v_mul_f32 v{QQ + rr}, {f2u(1 / 448):#x}, v{QQ + rr}
            v_rsq_f32 v{RS + rr}, v{QQ + rr}
            v_mul_f32 v{SS + rr}, s{sC2}, v{SS + rr}""")
            emit(fin, 99)
            a(f"v_mul_f32 v{CC + rr}, v{SS + rr}, v{RS + rr}")
            scale(rr)
        emit(fin, 99)
    if wdpos == 1: wdpf()
    if gpt == 2: gtouch()
    xl = []
    if not r0early:
        stamp(3)
        for m in range(4):
            for v in (SS, QQ, SS + 1, QQ + 1): a(f"v_add_f32_dpp v{v}, v{v}, v{v} row_ror:{1 << m} {FULL}")
        a(f"""v_pk_mul_f32 v[2:3], {vr(SS, 2)}, {vr(SS, 2)}
        v_fmac_f32 v{QQ}, {f2u(-1 / 448):#x}, v2
        v_fmac_f32 v{QQ + 1}, {f2u(-1 / 448):#x}, v3
        v_mul_f32 v{QQ}, {f2u(1 / 448):#x}, v{QQ}
        v_mul_f32 v{QQ + 1}, {f2u(1 / 448):#x}, v{QQ + 1}
        v_rsq_f32 v{RS}, v{QQ}
        v_rsq_f32 v{RS + 1}, v{QQ + 1}
        v_mul_f32 v{SS}, s{sC2}, v{SS}
        v_mul_f32 v{SS + 1}, s{sC2}, v{SS + 1}
        v_pk_mul_f32 {vr(CC, 2)}, {vr(SS, 2)}, {vr(RS, 2)}""")
        scale(0); scale(1)
    EE = XR; PK = CH + 16
    def packEO(mt, src, dst):
        for dp in range(2):
            for m in range(4): a(f"v_cvt_pk_bf16_f32 v{dst + 4 * dp + m}, v{src + 4 * m + dp}, v{src + 4 * m + 2 + dp}")
            a(f"ds_write_b128 v{vLW}, {vr(dst + 4 * dp, 4)} offset:{L_EO + 4096 * (2 * mt + dp)}")
    for mt in range(2):
        emit(xl, 1)
        for m in range(8):
            if mt == 0: a(f"v_pk_fma_f32 {vr(EE + 2 * m, 2)}, v[8:9], {vr(U + 16 + 2 * m, 2)}, {vr(U + 2 * m, 2)} op_sel_hi:[0,1,1]")
            else: a(f"v_pk_fma_f32 {vr(EE + 16 + 2 * m, 2)}, v[8:9], {vr(U + 2 * m, 2)}, {vr(U + 16 + 2 * m, 2)} {CHEB}")
        emit(xl, 1)
        packEO(mt, EE + 16 * mt, PK + 8 * mt)
    a(f"""s_waitcnt lgkmcnt(0)
    s_barrier""")
    stamp(4)
    if stamps: a("s_waitcnt lgkmcnt(0)")
    slots = [XR + 4 * i for i in range(8)] + [U + 4 * i for i in range(8)]
    ACC = CH
    def rd(n):
        k, md = n >> 2, n & 3
        if k < 3: a(f"ds_read_b128 {vr(slots[n], 4)}, v{vLR1 if k & 1 else vLR0} offset:{L_EO + md * 4096 + k * 1024}")
        else: a(f"ds_read_b64 {vr(slots[n], 2)}, v{vLR1} offset:{L_EO + md * 4096 + k * 1024}")
    def mm_(d, n, c_, first):
        k, dp = n >> 2, n & 1
        if k < 3: a(f"v_mfma_f32_16x16x32_bf16 {vr(d, 4)}, {vr(slots[n], 4)}, {vr(BF(c_, dp, k), 4)}, {'0' if first else vr(d, 4)}")
        else: a(f"v_mfma_f32_16x16x16_bf16 {vr(d, 4)}, {vr(slots[n], 2)}, {vr(BF(c_, dp, k), 2)}, {vr(d, 4)}")
    for n in range(pre): rd(n)
    a(f"s_add_u32 s{sNON}, s{sNON}, 1")
    def pacepub():
        a(f"""s_lshl2_add_u32 s{sT + 4}, s{sQ}, s{sW}
        s_cmp_eq_u32 s{sT + 4}, {4 * paceq + 3}
        s_cbranch_scc1 L_pace
        L_nopace:""")
    if pace == 1: pacepub()
    if mainstop == 1: a("s_branch L_fin")
    fill2 = [f"v_mov_b32 v{GS + m}, s{sNON}" for m in range(8)]
    xm = xloads(V1) + [ldst(V1)]
    emit(fill, 8)
    for n in range(16):
        a(f"s_waitcnt lgkmcnt({min(16, n + pre) - n - 1})")
        mm_(ACC + 4 * (n & 3), n, (n >> 1) & 1, n < 4)
        if n + pre < 16: rd(n + pre)
        else: emit(fill, 1)
        if xe == 1 and n % 2 == 1: emit(xm, 1)
    emit(fill, 99)
    if xe == 1: emit(xm, 99)
    if pace == 2: pacepub()
    if xe == 2: a(ldst(V1))
    a(f"s_cmp_lg_u32 s{sP}, 0\ns_cbranch_scc1 L_nofix")
    for k in range(4):
        for dp in range(2): mm_(CH + 16 + 4 * dp, 4 * k + 2 + dp, 0, k == 0)
    setexec(0xffff, 0)
    a(f"v_mov_b32 v{ACC + 12}, v{CH + 16}\nv_mov_b32 v{ACC + 8}, v{CH + 20}")
    fullexec()
    a("L_nofix:")
    stamp(12)
    T12 = B; FRG = B + 16; D2 = B + 24
    for t in range(2):
        for c_ in range(2):
            for h in range(2):
                ng = "" if t == 0 else (" neg_lo:[1,0] neg_hi:[1,0]" if c_ else " neg_lo:[0,1] neg_hi:[0,1]")
                a(f"v_pk_add_f32 {vr(T12 + 8 * t + 4 * c_ + 2 * h, 2)}, {vr(ACC + 8 * c_ + 2 * h, 2)}, {vr(ACC + 8 * c_ + 4 + 2 * h, 2)}{ng}")
        for m in range(4): a(f"v_cvt_pk_bf16_f32 v{FRG + 4 * t + m}, v{T12 + 8 * t + 2 * m}, v{T12 + 8 * t + 2 * m + 1}")
        emit(fill2, 2)
        for c_ in range(2):
            a(f"v_mfma_f32_16x16x32_bf16 {vr(D2 + 8 * t + 4 * c_, 4)}, {vr(M1 + 4 * c_, 4)}, {vr(FRG + 4 * t, 4)}, 0")
            emit(fill2, 1)
    for t in range(2):
        a(f"s_mov_b64 exec, s[{sE2}:{sE2 + 1}]")
        for r in range(4): a(f"v_cvt_pk_bf16_f32 v{GS + 4 * t + r}, v{D2 + 8 * t + r}, v{D2 + 8 * t + 4 + r}")
        fullexec()
        for r in range(4): a(f"buffer_store_dword v{GS + 4 * t + r}, v{vGB if t else vGA}, {srd(WS)}, s{sGR + r - 1 if r else sGA} offen sc1")
    stamp(5)
    if mainstop == 2: a("s_branch L_fin")
    mix(preB(V1) + genH(V1), [ldst(V1)] + xloads(V1), mgap)
    psetup()
    a(f"s_waitcnt vmcnt({0 if glate >= 0 else 9 if glate == -1 else 17})")
    phase2(V1, glate, unpack(V1))
    a("L_owner:")
    SEL = AF + 16; D = AF + 20
    a(f"""s_cmp_eq_u32 s{sFIN}, 0
    s_cbranch_scc1 L_own
    s_waitcnt lgkmcnt(0)
    s_barrier
    s_waitcnt vmcnt(0)
    s_barrier
    s_branch L_fin
    L_own:
    s_and_b32 s{sT + 2}, s{sW}, 1
    s_cmp_ge_u32 s{sW}, 2
    s_cselect_b32 s{sT + 1}, -1, 0
    s_cselect_b32 s{sT + 7}, 512, 0
    s_cselect_b32 s{sNI}, s{sNI}, s{sIDX}
    v_lshl_add_u32 v2, s{sT + 2}, 2, v13
    v_xor_b32 v2, s{sT + 1}, v2
    s_and_b32 s{sT + 1}, s{sT + 1}, 29
    v_add3_u32 v2, v2, s{sT + 1}, 3
    s_bfe_u32 s{sT}, s{sNI}, 0x20007
    s_lshl2_add_u32 s{sT + 7}, s{sT}, s{sT + 7}
    v_lshl_add_u32 v9, v2, 4, s{sT + 7}
    v_lshrrev_b32 v2, 2, v{vC}
    v_and_b32 v3, 1, v2
    v_lshlrev_b32 v3, 4, v3
    v_mov_b32 v15, 0x3f80
    v_cmp_gt_u32 vcc, 2, v2
    v_lshlrev_b32 v15, v3, v15
    s_and_b32 s{sT}, s{sKEY}, 0xfffff800
    v_cndmask_b32 v{SEL}, 0, v15, vcc
    v_cndmask_b32 v{SEL + 1}, v15, 0, vcc
    s_or_b32 s{sT}, s{sT}, 0x400
    s_ashr_i32 s{sT + 1}, s{sT}, 31
    s_orn2_b32 s{sT + 1}, 0x80000000, s{sT + 1}
    s_xor_b32 s{sT}, s{sT}, s{sT + 1}
    v_mov_b32 v15, s{sT}
    v_mul_f32 v15, s{sLG}, v15
    v_exp_f32 v15, v15
    s_lshr_b32 s{sT + 3}, 0x000f000f, s{sT + 2}
    v_add_f32 v15, 1.0, v15
    v_rcp_f32 v15, v15
    s_and_b32 s{sT + 3}, s{sT + 3}, 0x000f000f
    v_mul_f32 v15, s{sLG}, v15
    """)
    PB = AF
    def bissue():
        a(f"""v_add_u32 v{vPA}, {PCOPY if ab == 1 else 0}, v{vPA}
        v_mov_b32 v{PB + 12}, 0
        v_mov_b32 v{PB + 13}, 0
        v_mov_b32 v{PB + 14}, s{sNON}""")
        ploads(PB); fullexec()
    if ab and bpos == 0: bissue()
    a(f"""s_waitcnt lgkmcnt(0)
    s_barrier
    ds_read_b32 v{TV}, v9 offset:{L_ROW}""")
    if ab and bpos == 1: bissue()
    a(f"""s_waitcnt vmcnt({4 if ab else 0})
    s_barrier
    {f"s_memrealtime s[{sSTAMP + 2}:{sSTAMP + 3}]" if stamps else ""}""")
    def pred(R, first):
        for n in range(4): a(f"v_mfma_f32_16x16x16_bf16 {vr(D, 4)}, {vr(SEL, 2)}, {vr(R + 4 * n, 2)}, {'0' if n == 0 else vr(D, 4)}")
        if first: a(f"v_lshlrev_b32 v8, 16, v{TV + 1}\nv_fma_f32 v14, v8, v{TV + 2}, v{TV + 3}")
        a(f"""v_bitop3_b32 v2, v{R + 2}, v{R + 6}, s{sNON} bitop3:0x7e
        v_bitop3_b32 v3, v{R + 10}, v{R + 14}, s{sNON} bitop3:0x7e
        v_or_b32 v2, v2, v3
        v_cmp_ne_u32 vcc, 0, v2""")
    R2 = PB if ab else PR
    if ab:
        pred(PR, True)
        a("s_cbranch_vccz L_ppd")
        if stamps: a(f"s_add_u32 s{sCNT}, s{sCNT}, 1")
    a(f"""s_branch L_ppc
    L_pp:
    {sleep(ppsleep)}""")
    ploads(R2)
    fullexec()
    spin_check("L_ppd")
    a("L_ppc:\ns_waitcnt vmcnt(0)")
    pred(R2, not ab)
    a("s_cbranch_vccnz L_pp\nL_ppd:")
    stamp(10)
    a("s_waitcnt lgkmcnt(0)")
    for m in ["row_ror:4", "row_ror:8"]: a(f"v_add_f32_dpp v{D}, v{D}, v{D} {m} {FULL}")
    a(f"""v_fmac_f32 v14, v{D}, v15
    v_exp_f32 v3, v14
    v_mul_f32 v2, v14, v{TV}
    v_add_f32 v3, 1.0, v3
    v_rcp_f32 v3, v3
    s_mov_b32 exec_lo, s{sT + 3}
    s_mov_b32 exec_hi, s{sT + 3}
    v_fma_f32 v2, v2, v3, v8
    v_cvt_pk_bf16_f32 v2, v2, v2
    buffer_store_short v2, v12, {srd(OUT)}, s{sOA} offen {out_sc}""")
    stamp(11)
    if stamps: a(f"s_mov_b32 s{sSTAMP + 2 * 12}, s{sCNT}")
    a("L_fin:")
    write_stamps()
    a("L_end:\ns_endpgm")
    if wb:
        a(f"""L_wb:
        s_lshl2_add_u32 s{sT}, s{sQ}, s{sW}
        s_and_b32 s{sT}, s{sT}, {wb}
        s_cbranch_scc1 L_fin
        s_waitcnt vmcnt(0)
        buffer_wbl2 sc1
        s_branch L_fin""")
    if pace:
        a(f"""L_pace:
        v_mov_b32 v15, s{sNON}
        s_lshl_b32 s{sT + 4}, s{sTAU}, 7
        s_add_u32 s{sT + 4}, s{sT + 4}, {O_PACE}
        v_lshlrev_b32 v14, 10, v{vL}
        s_mov_b64 exec, 0xff
        s_bitset0_b32 exec_lo, s{sTAU}
        buffer_store_dword v15, v14, {srd(WS)}, s{sT + 4} offen sc1
        s_mov_b64 exec, -1
        s_branch L_nopace""")

    sRS, sRK = 99, 100
    a(f"""L_router:
    s_mov_b32 s{sT1}, s{sTAU}
    s_mov_b32 s{sTH}, 0
    s_mov_b32 s{sM}, s{sQ}""")
    emit(preA(V2) + preB(V2), 99)
    a(f"""v_mov_b32 v2, 0
    v_mov_b32 v3, 0
    ds_write_b64 v3, v[2:3] offset:{L_KEY}
    s_lshl_b32 s{sT}, s{sW}, 10
    v_add_u32 v15, s{sT}, v15
    v_add_u32 v14, s{sT}, v14
    v_mov_b32 v12, 0
    v_mov_b32 v{vS}, 0
    v_mov_b32 v{vQ}, {f2u(448e-5 / 8):#x}
    v_mov_b32 v{vR}, 0
    v_lshlrev_b32 v13, 4, v13
    s_lshl_b32 s{sRS}, s{sCA}, 8
    s_add_u32 s{sRS}, s{sRS}, {O_ST}
    v_lshlrev_b32 v11, {3 + ks}, v{vL}
    s_lshl_b32 s{sRK}, s{sP}, {ks}
    s_add_u32 s{sRK}, s{sRK}, {O_KEY}
    v_xor_b32 v6, 0x7ff, v6
    s_waitcnt lgkmcnt(0)
    s_barrier""")
    RPF = 0
    if kpt:
        setexec(0x01010101, 0x01010101)
        if kpt & 1:
            a(f"""s_cmp_eq_u32 s{sW}, 0
            s_cselect_b32 s{sT}, s{sRK}, s{WS + 2}
            buffer_store_dword v3, v11, {srd(WS)}, s{sT} offen sc1""")
            RPF += 1
        if kpt & 2:
            a(f"buffer_store_dword v3, v13, {srd(WS)}, s{sRS} offen sc1")
            RPF += 1
        fullexec()
    if rpf and rpfpos == 0: gupf(); RPF = 1
    a(f"""s_waitcnt vmcnt({8 + RPF})
    ds_write_b128 v15, {vr(WL, 4)} offset:{L_WR}""")
    for cb in range(7): a(f"ds_read_b128 {vr(RW + 4 * cb, 4)}, v14 offset:{L_WR + 128 * (6 - cb if rrev else cb)}")
    for m in range(4): a(f"v_dot2c_f32_bf16 v12, s{sONE}, v{WL + m}")
    stamp(2)
    wred = [f"v_add_f32_dpp v12, v12, v12 {m} bank_mask:0xf" for m in RED] + [f"v_readlane_b32 s{sSW}, v12, 63"]
    for cb in range(7):
        a(f"s_waitcnt vmcnt({6 - cb + RPF})")
        if cb == 0:
            a(f"""v_readfirstlane_b32 s{sNON}, v{vN}
            s_add_u32 s{sNON}, s{sNON}, 1""")
        if cb == 1: a("s_waitcnt lgkmcnt(0)")
        for m in range(4):
            x = RX + 4 * cb + m
            a(f"v_dot2c_f32_bf16 v{vS}, s{sONE}, v{x}\nv_dot2c_f32_bf16 v{vQ}, v{x}, v{x}")
            if cb == 1: a(f"v_dot2c_f32_bf16 v{vR}, v{RW + m}, v{RX + m}")
            if cb >= 1: a(f"v_dot2c_f32_bf16 v{vR}, v{RW + 4 * cb + m}, v{x}")
            if cb < 2: emit(wred, 1)
    stamp(3)
    a(f"v_mov_b32 v{ST4 + 3}, s{sNON}")
    for m in ["quad_perm:[1,0,3,2]", "quad_perm:[2,3,0,1]", "row_half_mirror"]:
        for v in (vS, vQ, vR): a(f"v_add_f32_dpp v{v}, v{v}, v{v} {m} {FULL}")
    a(f"""v_mul_f32 v{ST4 + 2}, {f2u(-1 / 448):#x}, v{vS}
    v_mul_f32 v2, {f2u(1 / 448):#x}, v{vQ}
    v_fma_f32 v2, -v{ST4 + 2}, v{ST4 + 2}, v2
    v_rsq_f32 v{ST4}, v2
    v_fmac_f32 v{vR}, s{sSW}, v{ST4 + 2}
    v_mul_f32 v{vR}, v{vR}, v{ST4}
    s_movk_i32 s{sT}, 0x7ff
    v_ashrrev_i32 v2, 31, v{vR}
    v_or_b32 v2, 0x80000000, v2
    v_xor_b32 v2, v2, v{vR}""")
    setexec(0x01010101, 0x01010101)
    a(f"""v_bfi_b32 v2, s{sT}, v6, v2
    ds_max_u32 v3, v2 offset:{L_KEY}
    v_mul_f32 v{ST4}, s{sLG}, v{ST4}
    v_mul_f32 v{ST4 + 1}, v{ST4 + 2}, v{ST4}
    v_mov_b32 v{vR + 1}, s{sNON}
    s_cmp_lg_u32 s{sW}, 0
    s_waitcnt lgkmcnt(0)
    s_barrier
    s_cbranch_scc1 L_nokey
    ds_read_b32 v{vR}, v3 offset:{L_KEY}
    s_waitcnt lgkmcnt(0)
    buffer_store_dwordx2 {vr(vR, 2)}, v11, {srd(WS)}, s{sRK} offen sc1""")
    stamp(4)
    a(f"""L_nokey:
    buffer_store_dwordx4 {vr(ST4, 4)}, v13, {srd(WS)}, s{sRS} offen sc1""")
    fullexec()
    if rpf and rpfpos == 1: gupf()
    if mainstop or 'e' in kill: a("s_branch L_fin")
    xl2 = xloads(V2)
    xl2.insert(stpos, ldst(V2))
    mix(genH(V2), xl2, mgap2)
    psetup()
    u2 = unpack(V2)
    if unpe and stpos == 16:
        a("s_waitcnt vmcnt(1)")
        emit(u2, 99)
    a("s_waitcnt vmcnt(0)")
    phase2(V2, glate2, u2)
    a("s_branch L_owner")

    sPB = 38
    if not fnear: ffn_pro()
    a(f"""L_ffn2:
    v_lshrrev_b32 v2, 2, v{vL}
    v_mul_u32_u24 v2, 3584, v2
    v_and_b32 v3, 3, v0
    v_lshl_add_u32 v6, v3, 4, v2
    s_mul_i32 s{sT + 3}, s{sT + 2}, {224 * 3584}
    s_lshl_b32 s{sT + 4}, s{sFT}, 6
    s_add_u32 s{sT + 3}, s{sT + 3}, s{sT + 4}
    s_mul_i32 s{sT + 6}, s{sW}, 14336
    s_mov_b32 m0, s{sT + 6}""")
    def dma(n):
        a(f"buffer_load_dwordx4 v6, {srd(PF)}, s{sT + 3} offen lds")
        if n < 13: a(f"s_add_u32 m0, m0, 1024\ns_add_u32 s{sT + 3}, s{sT + 3}, {16 * 3584}")
    if not sfirst:
        for n in range(n0): dma(n)
    a(f"""v_mul_u32_u24 v8, 224, v{vG}
    v_lshl_add_u32 v8, v{vC}, 4, v8
    s_mul_i32 s{sPO}, s{sFT}, 1792
    s_mul_i32 s{sT}, s{sW}, 448
    s_add_u32 s{sPO}, s{sPO}, s{sT}
    s_add_u32 s{sPO}, s{sPO}, {O_P}
    s_add_u32 s{sPB}, s{sPO}, {PCOPY}
    v_lshrrev_b32 v2, 2, v{vC}
    v_lshlrev_b32 v2, 6, v2
    v_lshl_add_u32 v2, v3, 3, v2
    v_lshl_add_u32 v9, v{vG}, 9, v2
    v_add_u32 v9, s{sT + 6}, v9
    v_lshlrev_b32 v10, {ks}, v{vL}
    s_mov_b32 s{sIDX}, -1
    s_lshl_b32 s{sKO}, s{sTAU}, {6 + ks}
    s_add_u32 s{sKO}, s{sKO}, {O_KEY}
    v_lshlrev_b32 v11, 4, v{vG}
    s_lshl_b32 s{sT}, s{sW}, 7
    v_add_u32 v12, s{sT}, v11
    s_lshl_b32 s{sLR}, s{sW}, 10
    s_add_u32 s{sLR}, s{sLR}, {L_FROW}
    v_add_u32 v11, s{sLR}, v11
    v_and_b32 v13, 7, v0
    v_lshlrev_b32 v13, 2, v13
    v_lshl_add_u32 v13, v{vG}, 5, v13
    v_add_u32 v13, {L_FEX}, v13
    v_lshlrev_b32 v200, 4, v{vL}
    s_mul_i32 s{sXO}, s{sT + 2}, 448
    s_mov_b32 s{sSEL}, 0x05040100
    s_mov_b32 s{sSEL + 1}, 0x07060302
    s_cmp_lg_u32 s{sW}, 3
    s_cselect_b32 s{sCA}, s{WS + 2}, {O_JC}
    s_lshl_b32 s{sT}, s{sFT}, 7
    s_add_u32 s{sCA}, s{sT}, s{sCA}""")
    for m in range(4): a(f"v_mov_b32 v{ONES + m}, s{sONE}")
    if sfirst:
        for n in range(n0): dma(n)
    a("s_waitcnt lgkmcnt(0)")
    if pt:
        for m in range(4): a(f"v_mov_b32 v{AC + m}, s{sNON}")
        setexec(0x3fff3fff, 0)
        a(f"buffer_store_dwordx4 {vr(AC, 4)}, v8, {srd(WS)}, s{sPO} offen sc1")
        if pt == 2: a(f"buffer_store_dwordx4 {vr(AC, 4)}, v8, {srd(WS)}, s{sPB} offen sc1")
        fullexec()
    a(f"s_add_u32 s{sNON}, s{sNON}, 1")
    perms = []
    for Tt in range(8):
        for m in range(4):
            perms.append(f"v_perm_b32 v{DF + 4 * Tt + m}, v{DR + 8 * m + 4 + (Tt >> 1)}, v{DR + 8 * m + (Tt >> 1)}, s{sSEL + (Tt & 1)}")
    a("s_barrier")
    def report():
        a(f"v_mov_b32 v2, s{sNON}")
        setexec(1, 0)
        a(f"buffer_store_dword v2, off, {srd(WS)}, s{sCA} sc1")
        fullexec()
    if frep == 0: report()
    def ldkey(): a(f"buffer_load_dwordx2 {vr(KYf, 2)}, v10, {srd(WS)}, s{sKO} offen sc1")
    def trd(n):
        for t in range(2):
            for hh in range(2):
                a(f"ds_read_b64_tr_b16 {vr(WF + 8 * n + 4 * t + 2 * hh, 2)}, v9 offset:{2048 * n + 256 * hh + 32 * t}")
    def csum(n):
        for t in range(2): a(f"v_mfma_f32_16x16x32_bf16 {vr(CS + 4 * t, 4)}, {vr(WF + 8 * n + 4 * t, 4)}, {vr(ONES, 4)}, {'0' if n == 0 else vr(CS + 4 * t, 4)}")
    def pick():
        a(f"""v_cmp_ne_u32 vcc, s{sNON}, v{KYf + 1}
        v_cndmask_b32 v2, v{KYf}, 0, vcc""")
        for m in RED: a(f"v_max_u32_dpp v2, v2, v2 {m} bank_mask:0xf")
        a(f"""v_readlane_b32 s{sKEY}, v2, 63
        s_andn2_b32 s{sT + 3}, 0x7ff, s{sKEY}""")
    def fetch():
        a(f"""s_mov_b32 s{sIDX}, s{sT + 3}
        s_mul_i32 s{sT}, s{sIDX}, 896
        s_add_u32 s{sT}, s{sT}, s{sXO}""")
        setexec(0xfffffff, 0)
        a(f"buffer_load_dwordx4 v200, {srd(X)}, s{sT} offen lds")
        fullexec()
        a(f"""s_and_b32 s{sT + 1}, s{sIDX}, 127
        s_lshl_b32 s{sT + 1}, s{sT + 1}, 8
        s_lshr_b32 s{sT + 3}, s{sIDX}, 7
        s_lshl4_add_u32 s{sT + 1}, s{sT + 3}, s{sT + 1}
        s_add_u32 s{sT + 1}, s{sT + 1}, {O_ST}
        buffer_load_dwordx4 {vr(STg, 4)}, off, {srd(WS)}, s{sT + 1} sc1""")
    assert keyp % 2 == 0 and dep >= 2
    for n in range(n0, 4): dma(n)
    wq = 0; wd2 = 0
    done = 0
    def consume(k, younger):
        a(f"s_waitcnt vmcnt({younger})")
        trd(k)
        if k > 0:
            a("s_waitcnt lgkmcnt(4)"); csum(k - 1)
    for n in range(2, 7):
        if 2 * n == keyp: ldkey()
        dma(2 * n); dma(2 * n + 1)
        k = n - dep
        if k >= 0:
            consume(k, 2 * dep + (1 if 2 * k + 1 < keyp <= 2 * n else 0) + (1 + int(pt) if 2 * k + 1 < n0 else 0)); done = k + 1
    if keyp == 14: ldkey()
    stamp(11)
    if stamps: a("s_waitcnt lgkmcnt(0)")
    a(f"s_mov_b32 m0, s{sLR}")
    while done < keyp // 2:
        consume(done, 13 - 2 * done); done += 1
    a(f"s_waitcnt vmcnt({14 - keyp})")
    pick(); fetch()
    a(f"""s_mov_b64 exec, vcc
    s_cbranch_vccz L_nrk""")
    ldkey()
    a("L_nrk:")
    fullexec()
    stamp(7)
    if stamps: a("s_waitcnt lgkmcnt(0)")
    if done < 7: a(f"s_cbranch_vccz L_w2\ns_waitcnt vmcnt(3)\ns_branch L_w3\nL_w2:\ns_waitcnt vmcnt(2)\nL_w3:")
    while done < 7:
        consume(done, 63); done += 1
    a("s_waitcnt lgkmcnt(0)"); csum(6)
    stamp(2)
    a(f"""s_cbranch_vccz L_fkd
    s_branch L_fkc
    L_fk:
    s_mov_b64 exec, vcc
    {sleep(fsleep)}""")
    ldkey()
    fullexec()
    spin_check("L_fkd")
    a("L_fkc:\ns_waitcnt vmcnt(0)")
    pick()
    a(f"""s_cmp_eq_u32 s{sT + 3}, s{sIDX}
    s_cbranch_scc1 L_fsame""")
    fetch()
    a(f"""L_fsame:
    s_cbranch_vccnz L_fk
    {"s_waitcnt vmcnt(0)" if wq else ""}
    L_fkd:""")
    stamp(4)
    ny = 0
    if not wdfirst:
        if not wq: wdl(wd2, 8)
        ny = 8 - wd2
    a(f"s_waitcnt vmcnt({1 + ny})")
    stamp(3)
    if stamps: a("s_waitcnt lgkmcnt(0)")
    for n in range(7): a(f"ds_read_b128 {vr(XFr + 4 * n, 4)}, v11 offset:{64 * n}")
    a(f"""s_waitcnt vmcnt({ny})
    s_branch L_fsc
    L_fs:
    buffer_load_dwordx4 {vr(STg, 4)}, off, {srd(WS)}, s{sT + 1} sc1""")
    spin_check("L_fsd")
    a("s_waitcnt vmcnt(0)\nL_fsc:")
    for m in range(4): a(f"v_pk_mul_f32 {vr(AC + 2 * m, 2)}, {vr(STg + 2, 2)}, {vr(CS + 2 * m, 2)} op_sel_hi:[0,1]")
    a(f"""v_cmp_ne_u32 vcc, s{sNON}, v{STg + 3}
    s_cbranch_vccnz L_fs
    L_fsd:""")
    for n in range(7):
        a(f"s_waitcnt lgkmcnt({6 - n})")
        for t in range(2):
            a(f"v_mfma_f32_16x16x32_bf16 {vr(AC + 4 * t, 4)}, {vr(WF + 8 * n + 4 * t, 4)}, {vr(XFr + 4 * n, 4)}, {vr(AC + 4 * t, 4)}")
            if permf and perms:
                if n == 1 and t == 1: a("s_waitcnt vmcnt(0)")
                if n >= 2: emit(perms, 2 - t)
    if permf: emit(perms, 6)
    stamp(5)
    a(f"v_mul_f32 v15, {f2u(LN2 * LN2):#x}, v{STg}\nv_mul_f32 v15, v15, v{STg}")

    setexec(0x00010001, 0x00010001)
    a(f"ds_write_b128 v12, {vr(AC, 4)} offset:{L_FEX}\nds_write_b128 v12, {vr(AC + 4, 4)} offset:{L_FEX + 64}")
    fullexec()
    if permf: emit(perms, 7)
    a(f"""s_waitcnt lgkmcnt(0)
    s_barrier
    ds_read2_b32 v[2:3], v13 offset0:0 offset1:64
    ds_read2_b32 v[6:7], v13 offset0:32 offset1:96""")
    if perms:
        a("s_waitcnt vmcnt(0)")
        emit(perms, 99)
    a(f"""s_waitcnt lgkmcnt(1)
    v_add_f32 v2, v2, v3
    v_mul_f32 v3, v{STg}, v2
    v_exp_f32 v3, v3
    s_waitcnt lgkmcnt(0)
    v_add_f32 v6, v6, v7
    v_add_f32 v3, 1.0, v3
    v_rcp_f32 v3, v3
    v_mul_f32 v2, v2, v6
    v_mul_f32 v2, v2, v15
    v_mul_f32 v2, v2, v3
    v_mov_b32 v{AC + 2}, s{sNON}
    v_mov_b32_dpp v3, v2 quad_perm:[1,1,3,3] {FULL}
    v_cvt_pk_bf16_f32 v2, v2, v3""")
    for m in range(4): a(f"v_mov_b32_dpp v{HF + m}, v2 row_newbcast:{2 * m} {FULL}")
    for Tt in range(8): a(f"v_mfma_f32_16x16x32_bf16 {vr(Y + 4 * Tt, 4)}, {vr(HF, 4)}, {vr(DF + 4 * Tt, 4)}, 0")
    a(f"""v_cvt_pk_bf16_f32 v{AC}, v{Y}, v{Y + 4}
    v_cvt_pk_bf16_f32 v{AC + 1}, v{Y + 8}, v{Y + 12}""")
    setexec(0x3fff0000, 0)
    a(f"""v_cvt_pk_bf16_f32 v{AC}, v{Y + 16}, v{Y + 20}
    v_cvt_pk_bf16_f32 v{AC + 1}, v{Y + 24}, v{Y + 28}
    s_mov_b32 exec_lo, 0x3fff3fff
    buffer_store_dwordx4 {vr(AC, 4)}, v8, {srd(WS)}, s{sPO} offen sc1""")
    if ab == 1: a(f"buffer_store_dwordx4 {vr(AC, 4)}, v8, {srd(WS)}, s{sPB} offen sc1")
    stamp(6)
    a("s_branch L_fin")
    a(f"""L_jan:
    {"s_branch L_end" if 'j' in kill else ""}
    s_cmp_ge_u32 s2, {NWG}
    s_cbranch_scc1 L_end
    s_cmp_lg_u32 s{sW}, 0
    s_cbranch_scc1 L_end""")
    a(f"""v_min_u32 v2, 55, v0
    v_lshlrev_b32 v21, 7, v2
    v_lshlrev_b32 v22, {ks}, v0
    v_lshlrev_b32 v23, 10, v0
    s_waitcnt lgkmcnt(0)
    s_load_dword s{sNON}, s[{WS}:{WS + 1}], 0
    s_mov_b32 s{sT + 4}, {O_JC}
    s_mov_b32 s{sT + 5}, {O_KEY}
    s_mov_b32 s{sT + 6}, {O_G}
    s_waitcnt lgkmcnt(0)
    s_add_u32 s{sNON}, s{sNON}, 1""")
    if helper:
        a(f"""v_mov_b32 v2, s{sNON}
        s_lshl_b32 s{sT}, s{sTAU}, 7
        s_add_u32 s{sT}, s{sT}, {O_JC + 56 * 128}""")
        setexec(1, 0)
        a(f"buffer_store_dword v2, off, {srd(WS)}, s{sT} sc1")
        fullexec()
        a(f"""v_lshlrev_b32 v21, 7, v0
        v_mov_b32 v10, v22
        s_lshl_b32 s{sKO}, s{sTAU}, {6 + ks}
        s_add_u32 s{sKO}, s{sKO}, {O_KEY}
        s_mov_b32 s{sIDX}, -1
        s_mov_b64 vcc, -1
        s_sleep {h0}
        L_hk:
        s_mov_b64 exec, vcc""")
        ldkey()
        fullexec()
        spin_check("L_hkd")
        a("s_waitcnt vmcnt(0)")
        pick()
        a(f"""s_cmp_eq_u32 s{sT + 3}, s{sIDX}
        s_cbranch_scc1 L_hsame
        s_mov_b32 s{sIDX}, s{sT + 3}
        s_mul_i32 s{sT}, s{sIDX}, 896
        s_and_b32 s{sT + 1}, s{sIDX}, 127
        s_lshl_b32 s{sT + 1}, s{sT + 1}, 8
        s_lshr_b32 s{sT + 3}, s{sIDX}, 7
        s_lshl4_add_u32 s{sT + 1}, s{sT + 3}, s{sT + 1}
        s_add_u32 s{sT + 1}, s{sT + 1}, {O_ST}""")
        setexec(0x7f, 0)
        a(f"""buffer_load_dword v30, v21, {srd(X)}, s{sT} offen
        buffer_load_dword v31, off, {srd(WS)}, s{sT + 1} sc1
        L_hsame:
        s_cbranch_vccz L_hkd
        {sleep(hsleep)}
        s_branch L_hk
        L_hkd:""")
        fullexec()
    a(f"""s_cmp_lg_u32 s2, {NREP}
    s_cbranch_scc1 L_end
    L_jk:
    s_sleep {jsleep}
    buffer_load_dword v24, v21, {srd(WS)}, s{sT + 4} offen sc1""")
    spin_check("L_jp")
    a(f"""s_waitcnt vmcnt(0)
    v_cmp_ne_u32 vcc, s{sNON}, v24
    s_cbranch_vccnz L_jk
    L_jp:
    s_sleep {jsleep2}
    buffer_load_dword v24, v22, {srd(WS)}, s{sT + 5} offen offset:4 sc1
    buffer_load_dword v25, v23, {srd(WS)}, s{sT + 6} offen sc1
    buffer_load_dword v26, v23, {srd(WS)}, s{sT + 6} offen offset:64 sc1""")
    spin_check("L_jpd")
    a(f"""s_waitcnt vmcnt(0)
    v_bitop3_b32 v2, v24, v25, s{sNON} bitop3:0x7e
    v_xor_b32 v3, s{sNON}, v26
    v_or_b32 v2, v2, v3
    v_cmp_ne_u32 vcc, 0, v2
    s_cbranch_vccnz L_jp
    L_jpd:
    v_mov_b32 v2, s{sNON}""")
    setexec(1, 0)
    a(f"buffer_store_dword v2, off, {srd(WS)}, 0\ns_endpgm")
    a("L_codeend:")
    body = hazard.fix(a.text(), verbose="-v" in sys.argv)
    if al: body = align.fix(body, al, verbose="-v" in sys.argv)
    txt = single(body, NWG, 256, lds=ldsz, vgpr=256, sgpr=102)
    return txt.replace(".text\n", ".text\n.p2align 12\n" + (f".fill {pad // 4}, 4, 0xbf800000\n" if pad else ""), 1)

if __name__ == "__main__":
    open("k30.s", "w").write(gen())
    open("k30_st.s", "w").write(gen(stamps=True))
```
